```python
import torch

def _softmax(x, axis=-1):
    return torch.softmax(x, dim=axis)

def _gelu(x):
    return torch.nn.functional.gelu(x, approximate='tanh')

def _silu(x):
    return torch.nn.functional.silu(x)

def _sigmoid(x):
    return torch.sigmoid(x)

def _layernorm(x, axis=-1, eps=1e-05):
    m = x.mean(dim=axis, keepdim=True)
    v = x.var(dim=axis, keepdim=True, unbiased=False)
    return (x - m) / torch.sqrt(v + eps)

def _scatter_add(tgt, idx, src, axis=0):
    return tgt.clone().index_add_(axis, idx, src)

def _segment_sum(src, seg, n):
    out = torch.zeros((n,) + src.shape[1:], dtype=src.dtype)
    return out.index_add_(0, seg, src)

def _pad(x, pw):
    flat = tuple((v for pair in reversed(pw) for v in pair))
    return torch.nn.functional.pad(x, flat)
kernel_name = 'standalone__tree_speculative_verify_tree_attention_over_candidate_token_tree__decode'

def setup_inputs():

    _w = lambda a: (lambda t: t.to(torch.bfloat16) if t.is_floating_point() else t)(torch.as_tensor(a))
    B, Hq, Hkv, T, C, D = (2, 32, 16, 1, 32768, 128)
    tree_mask = torch.zeros((B, T, T), dtype=float)
    for b in range(B):
        parent = torch.zeros(T, dtype=torch.int64)
        for i in range(1, T):
            parent[i] = int(torch.randint(0, i, (1,)).item())
        for i in range(T):
            j = i
            tree_mask[b, i, j] = 1.0
            while j > 0:
                j = parent[j]
                tree_mask[b, i, j] = 1.0
    return {'q': _w((lambda *s: torch.randn(*s, dtype=torch.bfloat16) * 0.8)(B, Hq, T, D)), 'k_cache': _w((lambda *s: torch.randn(*s, dtype=torch.bfloat16) * 0.8)(B, Hkv, C, D)), 'v_cache': _w((lambda *s: torch.randn(*s, dtype=torch.bfloat16) * 0.05)(B, Hkv, C, D)), 'k_tree': _w((lambda *s: torch.randn(*s, dtype=torch.bfloat16) * 0.8)(B, Hkv, T, D)), 'v_tree': _w((lambda *s: torch.randn(*s, dtype=torch.bfloat16) * 0.05)(B, Hkv, T, D)), 'tree_mask': _w(tree_mask)}

def reference(q, k_cache, v_cache, k_tree, v_tree, tree_mask):
    B, Hq, T, D = q.shape
    Hkv, C = (k_cache.shape[1], k_cache.shape[2])
    rep = Hq // Hkv
    kc = (lambda x, n, axis: torch.repeat_interleave(x, n, dim=axis))(k_cache, rep, axis=1)
    vc = (lambda x, n, axis: torch.repeat_interleave(x, n, dim=axis))(v_cache, rep, axis=1)
    kt = (lambda x, n, axis: torch.repeat_interleave(x, n, dim=axis))(k_tree, rep, axis=1)
    vt = (lambda x, n, axis: torch.repeat_interleave(x, n, dim=axis))(v_tree, rep, axis=1)
    k = torch.concatenate([kc, kt], axis=2)
    v = torch.concatenate([vc, vt], axis=2)
    scale = D ** (-0.5)
    scores = torch.einsum('bhqd,bhkd->bhqk', q, k) * scale
    ctx_mask = torch.ones((B, 1, T, C), dtype=scores.dtype)
    tm = tree_mask[:, None, :, :].clone()
    full_mask = torch.concatenate([ctx_mask, tm], axis=-1)
    scores = scores + (1.0 - full_mask) * -1000000000.0
    p = _softmax(scores, axis=-1)
    return torch.einsum('bhqk,bhkd->bhqd', p, v)
```

```python
import math
import struct
import sys

NAME = "standalone__tree_speculative_verify_tree_attention_over_candidate_token_tree__decode"

HEADER = """; Kernarg layout for this problem (72 bytes, ptrs only, base s[0:1]):
"""


def f32(x):
    return "0x%08x" % struct.unpack("<I", struct.pack("<f", x))[0]


class Asm:
    def __init__(self):
        self.lines = []

    def __call__(self, s):
        for ln in s.strip("\n").split("\n"):
            self.lines.append("    " + ln.strip() if not ln.strip().endswith(":") else ln.strip())

    def text(self):
        return "\n".join(self.lines) + "\n"


def gen(label, NW=8, S=8, NB=4, order="wg", kflags="nt", vflags="nt", wgmap="pairlow", stamp=False,
        compute=True):
    W = NW * S
    T = 2048 // W
    assert T * W == 2048 and T >= NB
    NWG = 32 * S
    TILE = 4096
    if order == "pair":
        A, Bw, STEP = NW * TILE, TILE, W * TILE
    elif order == "wg":
        A, Bw, STEP = T * NW * TILE, TILE, NW * TILE
    elif order == "wave":
        A, Bw, STEP = T * NW * TILE, T * TILE, TILE
    else:
        raise ValueError(order)
    c_scale = (128 ** -0.5) * math.log2(math.e)

    vKO, vVO = 1, 2
    vQ = 4
    vMASK = 20
    vS = 24
    vO = 28
    vM, vL = 32, 33
    vT, vT2, vA, vN = 34, 35, 36, 37
    vB = 40
    RING0 = 56
    ring_in_v = RING0 + 32 * NB <= 256
    ncomb = max(NW, S) * 6
    if ring_in_v:
        nv = max(RING0 + 32 * NB, RING0 + ncomb)
        acc_off = (nv + 3) // 4 * 4
        total = nv
    else:
        nv = RING0 + max(ncomb, 16)
        acc_off = (nv + 3) // 4 * 4
        total = acc_off + 32 * NB
    assert total <= 512 and acc_off <= 256

    def ring(b, part, i):
        o = 32 * b + 16 * part + 4 * i
        return ("v[%d:%d]" % (RING0 + o, RING0 + o + 3)) if ring_in_v else ("a[%d:%d]" % (o, o + 3))

    def q4(base, i=0):
        return "v[%d:%d]" % (base + 4 * i, base + 4 * i + 3)

    sQ, sK, sV, sKT, sVT, sMK, sOUT, sDBG, sWS = 4, 6, 8, 10, 12, 14, 16, 18, 20
    sKD, sVD = 24, 28
    sPAIR, sSPLIT, sWAVE, sOFF, sC, sCNT, sTMP, sDES = 32, 33, 34, 35, 36, 37, 38, 39
    sT0 = 40

    a = Asm()
    a(f"""
    s_cmp_ge_u32 s2, {NWG}
    s_cbranch_scc1 L_end_{label}
    s_load_dwordx16 s[4:19], s[0:1], 0
    s_load_dwordx2 s[20:21], s[0:1], 64
    """)
    if stamp:
        a(f"s_memrealtime s[{sT0}:{sT0+1}]")
    if wgmap == "pairlow":
        a(f"s_and_b32 s{sPAIR}, s2, 31\ns_lshr_b32 s{sSPLIT}, s2, 5")
    else:
        lg = int(math.log2(S))
        assert 1 << lg == S
        a(f"s_and_b32 s{sSPLIT}, s2, {S-1}\ns_lshr_b32 s{sPAIR}, s2, {lg}")
    a(f"""
    v_lshrrev_b32 v{vT}, 6, v0
    v_and_b32 v0, 63, v0
    v_readfirstlane_b32 s{sWAVE}, v{vT}
    v_and_b32 v{vT}, 15, v0
    v_lshrrev_b32 v{vT2}, 4, v0
    v_lshlrev_b32 v{vKO}, 8, v{vT}
    v_lshl_add_u32 v{vKO}, v{vT2}, 4, v{vKO}
    v_lshlrev_b32 v{vVO}, 10, v{vT2}
    v_lshl_add_u32 v{vVO}, v{vT}, 4, v{vVO}
    v_lshrrev_b32 v{vA}, 3, v{vT}
    v_lshlrev_b32 v{vA}, 8, v{vA}
    v_lshl_add_u32 v{vA}, v{vT2}, 4, v{vA}
    s_mul_i32 s{sOFF}, s{sSPLIT}, {A}
    s_mul_i32 s{sTMP}, s{sWAVE}, {Bw}
    s_add_u32 s{sOFF}, s{sOFF}, s{sTMP}
    s_or_b32 s{sDES}, s{sSPLIT}, s{sWAVE}
    s_lshl_b32 s{sTMP}, s{sPAIR}, 23
    s_mov_b32 s{sKD+2}, 0x800000
    s_mov_b32 s{sKD+3}, 0x20000
    s_mov_b32 s{sVD+2}, 0x800000
    s_mov_b32 s{sVD+3}, 0x20000
    s_lshl_b32 s{sCNT}, s{sPAIR}, 9
    s_waitcnt lgkmcnt(0)
    s_add_u32 s{sKD}, s{sK}, s{sTMP}
    s_addc_u32 s{sKD+1}, s{sK+1}, 0
    s_add_u32 s{sVD}, s{sV}, s{sTMP}
    s_addc_u32 s{sVD+1}, s{sV+1}, 0
    s_add_u32 s{sQ}, s{sQ}, s{sCNT}
    s_addc_u32 s{sQ+1}, s{sQ+1}, 0
    """)
    for i in range(4):
        a(f"global_load_dwordx4 {q4(vQ, i)}, v{vA}, s[{sQ}:{sQ+1}] offset:{64*i}")
    a(f"""
    s_cmp_lg_u32 s{sDES}, 0
    s_cbranch_scc1 L_ring_{label}
    s_lshl_b32 s{sTMP}, s{sPAIR}, 8
    s_add_u32 s{sKT}, s{sKT}, s{sTMP}
    s_addc_u32 s{sKT+1}, s{sKT+1}, 0
    s_add_u32 s{sVT}, s{sVT}, s{sTMP}
    s_addc_u32 s{sVT+1}, s{sVT+1}, 0
    s_lshr_b32 s{sTMP}, s{sPAIR}, 4
    s_lshl_b32 s{sTMP}, s{sTMP}, 1
    v_lshlrev_b32 v{vA}, 4, v{vT2}
    v_and_b32 v{vM}, 7, v0
    v_lshlrev_b32 v{vM}, 1, v{vM}
    v_lshl_add_u32 v{vM}, v{vT2}, 6, v{vM}
    v_mov_b32 v{vL}, s{sTMP}
    """)
    for i in range(4):
        a(f"global_load_dwordx4 {q4(vB, i)}, v{vA}, s[{sKT}:{sKT+1}] offset:{64*i}")
    for r in range(4):
        a(f"global_load_ushort v{vO+r}, v{vM}, s[{sVT}:{sVT+1}] offset:{16*r}")
    a(f"global_load_ushort v{vN}, v{vL}, s[{sMK}:{sMK+1}]")
    a(f"L_ring_{label}:")

    def issueK(b):
        for i in range(4):
            a(f"buffer_load_dwordx4 {ring(b,0,i)}, v{vKO}, s[{sKD}:{sKD+3}], s{sOFF} offen offset:{64*i} {kflags}")

    def issueV(b):
        for r in range(4):
            a(f"buffer_load_dwordx4 {ring(b,1,r)}, v{vVO}, s[{sVD}:{sVD+3}], s{sOFF} offen offset:{256*r} {vflags}")
        a(f"s_add_u32 s{sOFF}, s{sOFF}, {STEP}")

    for b in range(NB):
        issueK(b)
        issueV(b)
    a(f"""
    s_mov_b32 s{sC}, {f32(c_scale)}
    v_and_b32 v{vT}, 1, v0
    v_lshlrev_b32 v{vT}, 4, v{vT}
    v_mov_b32 v{vA}, 0xffff
    v_lshlrev_b32 v{vA}, v{vT}, v{vA}
    v_bfe_u32 v{vT}, v0, 1, 2
    """)
    for r in range(4):
        a(f"v_cmp_eq_u32 vcc, {r}, v{vT}\ns_nop 1\nv_cndmask_b32 v{vMASK+r}, 0, v{vA}, vcc")
    a(f"""
    s_cmp_lg_u32 s{sDES}, 0
    s_cbranch_scc1 L_plain_{label}
    s_waitcnt vmcnt({8*NB})
    v_mfma_f32_16x16x32_bf16 {q4(vS)}, {q4(vB,0)}, {q4(vQ,0)}, 0
    v_mfma_f32_16x16x32_bf16 {q4(vS)}, {q4(vB,1)}, {q4(vQ,1)}, {q4(vS)}
    v_mfma_f32_16x16x32_bf16 {q4(vS)}, {q4(vB,2)}, {q4(vQ,2)}, {q4(vS)}
    v_mfma_f32_16x16x32_bf16 {q4(vS)}, {q4(vB,3)}, {q4(vQ,3)}, {q4(vS)}
    v_lshlrev_b32 v{vO}, 16, v{vO}
    v_lshlrev_b32 v{vO+1}, 16, v{vO+1}
    v_lshlrev_b32 v{vO+2}, 16, v{vO+2}
    v_lshlrev_b32 v{vO+3}, 16, v{vO+3}
    v_lshlrev_b32 v{vN}, 16, v{vN}
    v_sub_f32 v{vN}, 1.0, v{vN}
    v_mul_f32 v{vN}, {f32(-1e9*math.log2(math.e))}, v{vN}
    v_cmp_gt_u32 vcc, 16, v0
    s_nop 1
    v_cndmask_b32 v{vL}, 0, 1.0, vcc
    v_fma_f32 v{vM}, v{vS}, s{sC}, v{vN}
    s_branch L_main_{label}
L_plain_{label}:
    v_mov_b32 v{vM}, 0xff800000
    v_mov_b32 v{vL}, 0
    v_mov_b32 v{vO}, 0
    v_mov_b32 v{vO+1}, 0
    v_mov_b32 v{vO+2}, 0
    v_mov_b32 v{vO+3}, 0
L_main_{label}:
    """)

    def tile(b, reissue, waitK, waitV):
        a(f"s_waitcnt vmcnt({waitK})")
        if not compute:
            if reissue:
                issueK(b)
            a(f"s_waitcnt vmcnt({waitV})")
            if reissue:
                issueV(b)
            return
        for i in range(4):
            c = "0" if i == 0 else q4(vS)
            a(f"v_mfma_f32_16x16x32_bf16 {q4(vS)}, {ring(b,0,i)}, {q4(vQ,i)}, {c}")
        if reissue:
            issueK(b)
            a("s_nop 3")
        else:
            a("s_nop 7")
        a(f"""
        v_max3_f32 v{vT}, v{vS}, v{vS+1}, v{vS+2}
        v_max_f32 v{vT}, v{vT}, v{vS+3}
        v_mov_b32 v{vT2}, v{vT}
        s_nop 1
        v_permlane16_swap_b32 v{vT}, v{vT2}
        v_max_f32 v{vT}, v{vT}, v{vT2}
        v_mov_b32 v{vT2}, v{vT}
        s_nop 1
        v_permlane32_swap_b32 v{vT}, v{vT2}
        v_max_f32 v{vT}, v{vT}, v{vT2}
        v_mul_f32 v{vT}, s{sC}, v{vT}
        v_max_f32 v{vN}, v{vM}, v{vT}
        v_sub_f32 v{vA}, v{vM}, v{vN}
        v_exp_f32 v{vA}, v{vA}
        v_mov_b32 v{vM}, v{vN}
        """)
        for r in range(4):
            a(f"v_fma_f32 v{vS+r}, v{vS+r}, s{sC}, -v{vN}")
        for r in range(4):
            a(f"v_exp_f32 v{vS+r}, v{vS+r}")
        for r in range(4):
            a(f"v_mul_f32 v{vO+r}, v{vO+r}, v{vA}")
        a(f"v_fma_f32 v{vL}, v{vL}, v{vA}, v{vS}")
        for r in range(1, 4):
            a(f"v_add_f32 v{vL}, v{vL}, v{vS+r}")
        for r in range(4):
            a(f"v_cvt_pk_bf16_f32 v{vS+r}, v{vS+r}, v{vS+r}")
        for r in range(4):
            for j in range(4):
                a(f"v_and_b32 v{vB+4*r+j}, v{vMASK+j}, v{vS+r}")
        a(f"s_waitcnt vmcnt({waitV})\ns_nop 0")
        for r in range(4):
            a(f"v_mfma_f32_16x16x32_bf16 {q4(vO)}, {ring(b,1,r)}, {q4(vB,r)}, {q4(vO)}")
        if reissue:
            issueV(b)

    L = (T - NB) // NB
    R = (T - NB) % NB
    steady = 8 * NB - 4
    if L > 0:
        a(f"s_mov_b32 s{sCNT}, {L}\nL_loop_{label}:")
        for b in range(NB):
            tile(b, True, steady, steady)
        a(f"s_sub_u32 s{sCNT}, s{sCNT}, 1\ns_cmp_lg_u32 s{sCNT}, 0\ns_cbranch_scc1 L_loop_{label}")
    for b in range(R):
        tile(b, True, steady, steady)
    for k in range(NB):
        left = NB - k
        tile((R + k) % NB, False, 8 * left - 4, 8 * left - 8)

    CB = RING0
    a(f"""
    s_mul_i32 s{sTMP}, s{sWAVE}, 1536
    v_lshlrev_b32 v{vKO}, 4, v0
    v_lshlrev_b32 v{vVO}, 3, v0
    v_add_u32 v{vT}, s{sTMP}, v{vKO}
    v_add_u32 v{vT2}, s{sTMP}, v{vVO}
    s_nop 4
    ds_write_b128 v{vT}, {q4(vO)}
    ds_write_b64 v{vT2}, v[{vM}:{vL}] offset:1024
    s_waitcnt lgkmcnt(0)
    s_barrier
    s_cmp_lg_u32 s{sWAVE}, 0
    s_cbranch_scc1 L_end_{label}
    """)

    def merge(n):
        ML = CB + 4 * n
        a(f"v_mov_b32 v{vM}, v{ML}")
        for i in range(1, n):
            a(f"v_max_f32 v{vM}, v{vM}, v{ML+2*i}")
        for i in range(n):
            a(f"v_sub_f32 v{ML+2*i}, v{ML+2*i}, v{vM}")
        for i in range(n):
            a(f"v_exp_f32 v{ML+2*i}, v{ML+2*i}")
        a("s_nop 0")
        a(f"v_mul_f32 v{vL}, v{ML}, v{ML+1}")
        for r in range(4):
            a(f"v_mul_f32 v{vO+r}, v{ML}, v{CB+r}")
        for i in range(1, n):
            a(f"v_fmac_f32 v{vL}, v{ML+2*i}, v{ML+2*i+1}")
            for r in range(4):
                a(f"v_fmac_f32 v{vO+r}, v{ML+2*i}, v{CB+4*i+r}")

    if NW > 1:
        for i in range(NW):
            a(f"ds_read_b64 v[{CB+4*NW+2*i}:{CB+4*NW+2*i+1}], v{vVO} offset:{1536*i+1024}")
        for i in range(NW):
            a(f"ds_read_b128 {q4(CB,i)}, v{vKO} offset:{1536*i}")
        a("s_waitcnt lgkmcnt(0)")
        merge(NW)
    a(f"""
    s_mul_i32 s{sTMP}, s{sPAIR}, {S*2048}
    s_add_u32 s{sWS}, s{sWS}, s{sTMP}
    s_addc_u32 s{sWS+1}, s{sWS+1}, 0
    s_lshl_b32 s{sTMP}, s{sSPLIT}, 11
    v_add_u32 v{vT}, s{sTMP}, v{vKO}
    v_add_u32 v{vT2}, s{sTMP}, v{vVO}
    global_store_dwordx4 v{vT}, {q4(vO)}, s[{sWS}:{sWS+1}] sc1
    global_store_dwordx2 v{vT2}, v[{vM}:{vL}], s[{sWS}:{sWS+1}] offset:1024 sc1
    s_lshl_b32 s{sTMP}, s{sPAIR}, 2
    v_mov_b32 v{vA}, s{sTMP}
    v_mov_b32 v{vN}, 1
    s_mov_b64 exec, 1
    s_waitcnt vmcnt(0)
    global_atomic_add v{vN}, v{vA}, v{vN}, s[{sDBG}:{sDBG+1}] sc0
    s_waitcnt vmcnt(0)
    v_readfirstlane_b32 s{sTMP}, v{vN}
    s_mov_b64 exec, -1
    """)
    if stamp:
        a(f"""
        s_memrealtime s[{sT0+2}:{sT0+3}]
        s_getreg_b32 s{sT0+4}, hwreg(HW_REG_XCC_ID)
        s_getreg_b32 s{sT0+5}, hwreg(HW_REG_HW_ID)
        s_load_dwordx2 s[{sT0+6}:{sT0+7}], s[0:1], 64
        s_waitcnt lgkmcnt(0)
        v_mov_b32 v{vS}, s{sT0}
        v_mov_b32 v{vS+1}, s{sT0+2}
        v_mov_b32 v{vS+2}, s{sT0+4}
        v_mov_b32 v{vS+3}, s{sT0+5}
        s_lshl_b32 s{sT0}, s2, 4
        s_add_u32 s{sT0}, s{sT0}, 0x1000000
        v_mov_b32 v{vA}, s{sT0}
        s_mov_b64 exec, 1
        global_store_dwordx4 v{vA}, {q4(vS)}, s[{sT0+6}:{sT0+7}]
        s_mov_b64 exec, -1
        """)
    a(f"""
    s_cmp_lg_u32 s{sTMP}, {S-1}
    s_cbranch_scc1 L_end_{label}
    """)
    for i in range(S):
        off = 2048 * i
        if off + 1024 > 4095 and i % 2 == 0:
            a(f"v_add_u32 v{vVO}, 4096, v{vVO}\nv_add_u32 v{vKO}, 4096, v{vKO}")
        o = off % 4096
        a(f"global_load_dwordx2 v[{CB+4*S+2*i}:{CB+4*S+2*i+1}], v{vVO}, s[{sWS}:{sWS+1}] offset:{o+1024} sc1")
        a(f"global_load_dwordx4 {q4(CB,i)}, v{vKO}, s[{sWS}:{sWS+1}] offset:{o} sc1")
    a(f"""
    s_lshl_b32 s{sTMP}, s{sPAIR}, 9
    s_add_u32 s{sOUT}, s{sOUT}, s{sTMP}
    s_addc_u32 s{sOUT+1}, s{sOUT+1}, 0
    v_bfe_u32 v{vT}, v0, 3, 1
    v_lshlrev_b32 v{vA}, 8, v{vT}
    v_lshrrev_b32 v{vT}, 4, v0
    v_lshl_add_u32 v{vA}, v{vT}, 6, v{vA}
    v_and_b32 v{vT}, 7, v0
    v_lshl_add_u32 v{vA}, v{vT}, 1, v{vA}
    s_waitcnt vmcnt(0)
    """)
    merge(S)
    a(f"""
    v_mov_b32 v{vT2}, v{vL}
    s_nop 1
    v_permlane16_swap_b32 v{vL}, v{vT2}
    v_add_f32 v{vL}, v{vL}, v{vT2}
    v_mov_b32 v{vT2}, v{vL}
    s_nop 1
    v_permlane32_swap_b32 v{vL}, v{vT2}
    v_add_f32 v{vL}, v{vL}, v{vT2}
    v_rcp_f32 v{vL}, v{vL}
    s_nop 0
    v_mul_f32 v{vO}, v{vO}, v{vL}
    v_mul_f32 v{vO+1}, v{vO+1}, v{vL}
    v_mul_f32 v{vO+2}, v{vO+2}, v{vL}
    v_mul_f32 v{vO+3}, v{vO+3}, v{vL}
    v_cvt_pk_bf16_f32 v{vO}, v{vO}, v{vO+1}
    v_cvt_pk_bf16_f32 v{vO+2}, v{vO+2}, v{vO+3}
    s_nop 0
    global_store_short v{vA}, v{vO}, s[{sOUT}:{sOUT+1}]
    global_store_short_d16_hi v{vA}, v{vO}, s[{sOUT}:{sOUT+1}] offset:16
    global_store_short v{vA}, v{vO+2}, s[{sOUT}:{sOUT+1}] offset:32
    global_store_short_d16_hi v{vA}, v{vO+2}, s[{sOUT}:{sOUT+1}] offset:48
L_end_{label}:
    s_endpgm
    """)
    lds = NW * 1536
    return dict(label=label, body=a.text(), grid=NWG, block=64 * NW, lds=lds, nvgpr=total, acc=acc_off, nsgpr=48)


def kernel_text(k):
    return f""".text
.globl {k['label']}
.p2align 8
.type {k['label']},@function
{k['label']}:
{k['body']}.section .rodata,"a"
.p2align 6
.amdhsa_kernel {k['label']}
  .amdhsa_next_free_vgpr {k['nvgpr']}
  .amdhsa_next_free_sgpr {k['nsgpr']}
  .amdhsa_accum_offset {k['acc']}
  .amdhsa_group_segment_fixed_size 0
  .amdhsa_kernarg_size 72
  .amdhsa_user_sgpr_count 2
  .amdhsa_user_sgpr_kernarg_segment_ptr 1
  .amdhsa_system_sgpr_workgroup_id_x 1
  .amdhsa_float_denorm_mode_32 3
.end_amdhsa_kernel
"""


def final_file(k):
    return (HEADER + f"; @launch grid=({k['grid']},1,1) block=({k['block']},1,1) lds={k['lds']}\n"
            + '.amdgcn_target "amdgcn-amd-amdhsa--gfx950"\n' + kernel_text(k))


def meta(ks):
    s = ".amdgpu_metadata\n---\namdhsa.version: [1, 2]\namdhsa.kernels:\n"
    for k in ks:
        s += f"""  - .name: {k['label']}
    .symbol: {k['label']}.kd
    .kernarg_segment_size: 72
    .kernarg_segment_align: 8
    .group_segment_fixed_size: 0
    .private_segment_fixed_size: 0
    .wavefront_size: 64
    .sgpr_count: {k['nsgpr']}
    .vgpr_count: {k['nvgpr']}
    .max_flat_workgroup_size: {k['block']}
    .args:
      - {{.name: kernargs, .size: 72, .offset: 0, .value_kind: by_value}}
"""
    return s + "...\n.end_amdgpu_metadata\n"


def bench_file(ks):
    return '.amdgcn_target "amdgcn-amd-amdhsa--gfx950"\n' + "".join(kernel_text(k) for k in ks) + meta(ks)


if __name__ == "__main__":
    k = gen(NAME + "_kernel")
    sys.stdout.write(final_file(k))
```

```python
import math
import struct
import sys

NAME = "standalone__tree_speculative_verify_tree_attention_over_candidate_token_tree__decode"

HEADER = """; Kernarg layout for this problem (72 bytes, ptrs only, base s[0:1]):
"""


def f32(x):
    return "0x%08x" % struct.unpack("<I", struct.pack("<f", x))[0]


class Asm:
    def __init__(self):
        self.lines = []

    def __call__(self, s):
        for ln in s.strip("\n").split("\n"):
            self.lines.append("    " + ln.strip() if not ln.strip().endswith(":") else ln.strip())

    def text(self):
        return "\n".join(self.lines) + "\n"


def gen(label, NW=8, S=8, NB=4, order="wg", kflags="nt", vflags="nt", wgmap="pairlow", stamp=False,
        compute=True):
    W = NW * S
    T = 2048 // W
    assert T * W == 2048 and T >= NB
    NWG = 32 * S
    TILE = 4096
    if order == "pair":
        A, Bw, STEP = NW * TILE, TILE, W * TILE
    elif order == "wg":
        A, Bw, STEP = T * NW * TILE, TILE, NW * TILE
    elif order == "wave":
        A, Bw, STEP = T * NW * TILE, T * TILE, TILE
    else:
        raise ValueError(order)
    c_scale = (128 ** -0.5) * math.log2(math.e)

    vKO, vVO = 1, 2
    vO = 4
    vM, vL = 8, 9
    vT, vT2, vA, vN = 10, 11, 12, 13
    vS = 16
    CB = 20
    vQ = 20
    vMASK = 36
    vB = 40
    RING0 = 56
    ring_in_v = RING0 + 32 * NB <= 256
    ncomb = max(NW, S) * 6
    if ring_in_v:
        nv = max(RING0 + 32 * NB, CB + ncomb)
        acc_off = (nv + 3) // 4 * 4
        total = nv
    else:
        nv = max(RING0, CB + ncomb)
        acc_off = (nv + 3) // 4 * 4
        total = acc_off + 32 * NB
    assert total <= 512 and acc_off <= 256
    assert (512 // ((total + 7) // 8 * 8)) * 4 >= NW, "workgroup does not fit the register file"

    def ring(b, part, i):
        o = 32 * b + 16 * part + 4 * i
        return ("v[%d:%d]" % (RING0 + o, RING0 + o + 3)) if ring_in_v else ("a[%d:%d]" % (o, o + 3))

    def q4(base, i=0):
        return "v[%d:%d]" % (base + 4 * i, base + 4 * i + 3)

    sQ, sK, sV, sKT, sVT, sMK, sOUT, sDBG, sWS = 4, 6, 8, 10, 12, 14, 16, 18, 20
    sKD, sVD = 24, 28
    sPAIR, sSPLIT, sWAVE, sOFF, sC, sCNT, sTMP, sDES = 32, 33, 34, 35, 36, 37, 38, 39
    sT0 = 40

    a = Asm()
    a(f"""
    s_cmp_ge_u32 s2, {NWG}
    s_cbranch_scc1 L_end_{label}
    s_load_dwordx16 s[4:19], s[0:1], 0
    s_load_dwordx2 s[20:21], s[0:1], 64
    """)
    if stamp:
        a(f"s_memrealtime s[{sT0}:{sT0+1}]")
    if wgmap == "pairlow":
        a(f"s_and_b32 s{sPAIR}, s2, 31\ns_lshr_b32 s{sSPLIT}, s2, 5")
    else:
        lg = int(math.log2(S))
        assert 1 << lg == S
        a(f"s_and_b32 s{sSPLIT}, s2, {S-1}\ns_lshr_b32 s{sPAIR}, s2, {lg}")
    a(f"""
    v_lshrrev_b32 v{vT}, 6, v0
    v_and_b32 v0, 63, v0
    v_readfirstlane_b32 s{sWAVE}, v{vT}
    v_and_b32 v{vT}, 15, v0
    v_lshrrev_b32 v{vT2}, 4, v0
    v_lshlrev_b32 v{vKO}, 8, v{vT}
    v_lshl_add_u32 v{vKO}, v{vT2}, 4, v{vKO}
    v_lshlrev_b32 v{vVO}, 10, v{vT2}
    v_lshl_add_u32 v{vVO}, v{vT}, 4, v{vVO}
    v_lshrrev_b32 v{vA}, 3, v{vT}
    v_lshlrev_b32 v{vA}, 8, v{vA}
    v_lshl_add_u32 v{vA}, v{vT2}, 4, v{vA}
    s_mul_i32 s{sOFF}, s{sSPLIT}, {A}
    s_mul_i32 s{sTMP}, s{sWAVE}, {Bw}
    s_add_u32 s{sOFF}, s{sOFF}, s{sTMP}
    s_or_b32 s{sDES}, s{sSPLIT}, s{sWAVE}
    s_lshl_b32 s{sTMP}, s{sPAIR}, 23
    s_mov_b32 s{sKD+2}, 0x800000
    s_mov_b32 s{sKD+3}, 0x20000
    s_mov_b32 s{sVD+2}, 0x800000
    s_mov_b32 s{sVD+3}, 0x20000
    s_lshl_b32 s{sCNT}, s{sPAIR}, 9
    s_waitcnt lgkmcnt(0)
    s_add_u32 s{sKD}, s{sK}, s{sTMP}
    s_addc_u32 s{sKD+1}, s{sK+1}, 0
    s_add_u32 s{sVD}, s{sV}, s{sTMP}
    s_addc_u32 s{sVD+1}, s{sV+1}, 0
    s_add_u32 s{sQ}, s{sQ}, s{sCNT}
    s_addc_u32 s{sQ+1}, s{sQ+1}, 0
    """)
    for i in range(4):
        a(f"global_load_dwordx4 {q4(vQ, i)}, v{vA}, s[{sQ}:{sQ+1}] offset:{64*i}")
    a(f"""
    s_cmp_lg_u32 s{sDES}, 0
    s_cbranch_scc1 L_ring_{label}
    s_lshl_b32 s{sTMP}, s{sPAIR}, 8
    s_add_u32 s{sKT}, s{sKT}, s{sTMP}
    s_addc_u32 s{sKT+1}, s{sKT+1}, 0
    s_add_u32 s{sVT}, s{sVT}, s{sTMP}
    s_addc_u32 s{sVT+1}, s{sVT+1}, 0
    s_lshr_b32 s{sTMP}, s{sPAIR}, 4
    s_lshl_b32 s{sTMP}, s{sTMP}, 1
    v_lshlrev_b32 v{vA}, 4, v{vT2}
    v_and_b32 v{vM}, 7, v0
    v_lshlrev_b32 v{vM}, 1, v{vM}
    v_lshl_add_u32 v{vM}, v{vT2}, 6, v{vM}
    v_mov_b32 v{vL}, s{sTMP}
    """)
    for i in range(4):
        a(f"global_load_dwordx4 {q4(vB, i)}, v{vA}, s[{sKT}:{sKT+1}] offset:{64*i}")
    for r in range(4):
        a(f"global_load_ushort v{vO+r}, v{vM}, s[{sVT}:{sVT+1}] offset:{16*r}")
    a(f"global_load_ushort v{vN}, v{vL}, s[{sMK}:{sMK+1}]")
    a(f"L_ring_{label}:")

    def issueK(b):
        for i in range(4):
            a(f"buffer_load_dwordx4 {ring(b,0,i)}, v{vKO}, s[{sKD}:{sKD+3}], s{sOFF} offen offset:{64*i} {kflags}")

    def issueV(b):
        for r in range(4):
            a(f"buffer_load_dwordx4 {ring(b,1,r)}, v{vVO}, s[{sVD}:{sVD+3}], s{sOFF} offen offset:{256*r} {vflags}")
        a(f"s_add_u32 s{sOFF}, s{sOFF}, {STEP}")

    for b in range(NB):
        issueK(b)
        issueV(b)
    a(f"""
    s_mov_b32 s{sC}, {f32(c_scale)}
    v_and_b32 v{vT}, 1, v0
    v_lshlrev_b32 v{vT}, 4, v{vT}
    v_mov_b32 v{vA}, 0xffff
    v_lshlrev_b32 v{vA}, v{vT}, v{vA}
    v_bfe_u32 v{vT}, v0, 1, 2
    """)
    for r in range(4):
        a(f"v_cmp_eq_u32 vcc, {r}, v{vT}\ns_nop 1\nv_cndmask_b32 v{vMASK+r}, 0, v{vA}, vcc")
    a(f"""
    s_cmp_lg_u32 s{sDES}, 0
    s_cbranch_scc1 L_plain_{label}
    s_waitcnt vmcnt({8*NB})
    v_mfma_f32_16x16x32_bf16 {q4(vS)}, {q4(vB,0)}, {q4(vQ,0)}, 0
    v_mfma_f32_16x16x32_bf16 {q4(vS)}, {q4(vB,1)}, {q4(vQ,1)}, {q4(vS)}
    v_mfma_f32_16x16x32_bf16 {q4(vS)}, {q4(vB,2)}, {q4(vQ,2)}, {q4(vS)}
    v_mfma_f32_16x16x32_bf16 {q4(vS)}, {q4(vB,3)}, {q4(vQ,3)}, {q4(vS)}
    v_lshlrev_b32 v{vO}, 16, v{vO}
    v_lshlrev_b32 v{vO+1}, 16, v{vO+1}
    v_lshlrev_b32 v{vO+2}, 16, v{vO+2}
    v_lshlrev_b32 v{vO+3}, 16, v{vO+3}
    v_lshlrev_b32 v{vN}, 16, v{vN}
    v_sub_f32 v{vN}, 1.0, v{vN}
    v_mul_f32 v{vN}, {f32(-1e9*math.log2(math.e))}, v{vN}
    v_cmp_gt_u32 vcc, 16, v0
    s_nop 1
    v_cndmask_b32 v{vL}, 0, 1.0, vcc
    v_fma_f32 v{vM}, v{vS}, s{sC}, v{vN}
    s_branch L_main_{label}
L_plain_{label}:
    v_mov_b32 v{vM}, 0xff800000
    v_mov_b32 v{vL}, 0
    v_mov_b32 v{vO}, 0
    v_mov_b32 v{vO+1}, 0
    v_mov_b32 v{vO+2}, 0
    v_mov_b32 v{vO+3}, 0
L_main_{label}:
    """)

    def tile(b, reissue, waitK, waitV):
        a(f"s_waitcnt vmcnt({waitK})")
        if not compute:
            if reissue:
                issueK(b)
            a(f"s_waitcnt vmcnt({waitV})")
            if reissue:
                issueV(b)
            return
        for i in range(4):
            c = "0" if i == 0 else q4(vS)
            a(f"v_mfma_f32_16x16x32_bf16 {q4(vS)}, {ring(b,0,i)}, {q4(vQ,i)}, {c}")
        if reissue:
            issueK(b)
            a("s_nop 3")
        else:
            a("s_nop 7")
        a(f"""
        v_max3_f32 v{vT}, v{vS}, v{vS+1}, v{vS+2}
        v_max_f32 v{vT}, v{vT}, v{vS+3}
        v_mov_b32 v{vT2}, v{vT}
        s_nop 1
        v_permlane16_swap_b32 v{vT}, v{vT2}
        v_max_f32 v{vT}, v{vT}, v{vT2}
        v_mov_b32 v{vT2}, v{vT}
        s_nop 1
        v_permlane32_swap_b32 v{vT}, v{vT2}
        v_max_f32 v{vT}, v{vT}, v{vT2}
        v_mul_f32 v{vT}, s{sC}, v{vT}
        v_max_f32 v{vN}, v{vM}, v{vT}
        v_sub_f32 v{vA}, v{vM}, v{vN}
        v_exp_f32 v{vA}, v{vA}
        v_mov_b32 v{vM}, v{vN}
        """)
        for r in range(4):
            a(f"v_fma_f32 v{vS+r}, v{vS+r}, s{sC}, -v{vN}")
        for r in range(4):
            a(f"v_exp_f32 v{vS+r}, v{vS+r}")
        for r in range(4):
            a(f"v_mul_f32 v{vO+r}, v{vO+r}, v{vA}")
        a(f"v_fma_f32 v{vL}, v{vL}, v{vA}, v{vS}")
        for r in range(1, 4):
            a(f"v_add_f32 v{vL}, v{vL}, v{vS+r}")
        for r in range(4):
            a(f"v_cvt_pk_bf16_f32 v{vS+r}, v{vS+r}, v{vS+r}")
        for r in range(4):
            for j in range(4):
                a(f"v_and_b32 v{vB+4*r+j}, v{vMASK+j}, v{vS+r}")
        a(f"s_waitcnt vmcnt({waitV})\ns_nop 0")
        for r in range(4):
            a(f"v_mfma_f32_16x16x32_bf16 {q4(vO)}, {ring(b,1,r)}, {q4(vB,r)}, {q4(vO)}")
        if reissue:
            issueV(b)

    L = (T - NB) // NB
    R = (T - NB) % NB
    steady = 8 * NB - 4
    if L > 0:
        a(f"s_mov_b32 s{sCNT}, {L}\nL_loop_{label}:")
        for b in range(NB):
            tile(b, True, steady, steady)
        a(f"s_sub_u32 s{sCNT}, s{sCNT}, 1\ns_cmp_lg_u32 s{sCNT}, 0\ns_cbranch_scc1 L_loop_{label}")
    for b in range(R):
        tile(b, True, steady, steady)
    for k in range(NB):
        left = NB - k
        tile((R + k) % NB, False, 8 * left - 4, 8 * left - 8)

    a(f"""
    s_mul_i32 s{sTMP}, s{sWAVE}, 1536
    v_lshlrev_b32 v{vKO}, 4, v0
    v_lshlrev_b32 v{vVO}, 3, v0
    v_add_u32 v{vT}, s{sTMP}, v{vKO}
    v_add_u32 v{vT2}, s{sTMP}, v{vVO}
    s_nop 4
    ds_write_b128 v{vT}, {q4(vO)}
    ds_write_b64 v{vT2}, v[{vM}:{vL}] offset:1024
    s_waitcnt lgkmcnt(0)
    s_barrier
    s_cmp_lg_u32 s{sWAVE}, 0
    s_cbranch_scc1 L_end_{label}
    """)

    def merge(n):
        ML = CB + 4 * n
        a(f"v_mov_b32 v{vM}, v{ML}")
        for i in range(1, n):
            a(f"v_max_f32 v{vM}, v{vM}, v{ML+2*i}")
        for i in range(n):
            a(f"v_sub_f32 v{ML+2*i}, v{ML+2*i}, v{vM}")
        for i in range(n):
            a(f"v_exp_f32 v{ML+2*i}, v{ML+2*i}")
        a("s_nop 0")
        a(f"v_mul_f32 v{vL}, v{ML}, v{ML+1}")
        for r in range(4):
            a(f"v_mul_f32 v{vO+r}, v{ML}, v{CB+r}")
        for i in range(1, n):
            a(f"v_fmac_f32 v{vL}, v{ML+2*i}, v{ML+2*i+1}")
            for r in range(4):
                a(f"v_fmac_f32 v{vO+r}, v{ML+2*i}, v{CB+4*i+r}")

    if NW > 1:
        for i in range(NW):
            a(f"ds_read_b64 v[{CB+4*NW+2*i}:{CB+4*NW+2*i+1}], v{vVO} offset:{1536*i+1024}")
        for i in range(NW):
            a(f"ds_read_b128 {q4(CB,i)}, v{vKO} offset:{1536*i}")
        a("s_waitcnt lgkmcnt(0)")
        merge(NW)
    a(f"""
    s_mul_i32 s{sTMP}, s{sPAIR}, {S*2048}
    s_add_u32 s{sWS}, s{sWS}, s{sTMP}
    s_addc_u32 s{sWS+1}, s{sWS+1}, 0
    s_lshl_b32 s{sTMP}, s{sSPLIT}, 11
    v_add_u32 v{vT}, s{sTMP}, v{vKO}
    v_add_u32 v{vT2}, s{sTMP}, v{vVO}
    global_store_dwordx4 v{vT}, {q4(vO)}, s[{sWS}:{sWS+1}] sc1
    global_store_dwordx2 v{vT2}, v[{vM}:{vL}], s[{sWS}:{sWS+1}] offset:1024 sc1
    s_lshl_b32 s{sTMP}, s{sPAIR}, 2
    v_mov_b32 v{vA}, s{sTMP}
    v_mov_b32 v{vN}, 1
    s_mov_b64 exec, 1
    s_waitcnt vmcnt(0)
    global_atomic_add v{vN}, v{vA}, v{vN}, s[{sDBG}:{sDBG+1}] sc0
    s_waitcnt vmcnt(0)
    v_readfirstlane_b32 s{sTMP}, v{vN}
    s_mov_b64 exec, -1
    """)
    if stamp:
        a(f"""
        s_memrealtime s[{sT0+2}:{sT0+3}]
        s_getreg_b32 s{sT0+4}, hwreg(HW_REG_XCC_ID)
        s_getreg_b32 s{sT0+5}, hwreg(HW_REG_HW_ID)
        s_load_dwordx2 s[{sT0+6}:{sT0+7}], s[0:1], 64
        s_waitcnt lgkmcnt(0)
        v_mov_b32 v{vS}, s{sT0}
        v_mov_b32 v{vS+1}, s{sT0+2}
        v_mov_b32 v{vS+2}, s{sT0+4}
        v_mov_b32 v{vS+3}, s{sT0+5}
        s_lshl_b32 s{sT0}, s2, 4
        s_add_u32 s{sT0}, s{sT0}, 0x1000000
        v_mov_b32 v{vA}, s{sT0}
        s_mov_b64 exec, 1
        global_store_dwordx4 v{vA}, {q4(vS)}, s[{sT0+6}:{sT0+7}]
        s_mov_b64 exec, -1
        """)
    a(f"""
    s_cmp_lg_u32 s{sTMP}, {S-1}
    s_cbranch_scc1 L_end_{label}
    """)
    for i in range(S):
        off = 2048 * i
        if off + 1024 > 4095 and i % 2 == 0:
            a(f"v_add_u32 v{vVO}, 4096, v{vVO}\nv_add_u32 v{vKO}, 4096, v{vKO}")
        o = off % 4096
        a(f"global_load_dwordx2 v[{CB+4*S+2*i}:{CB+4*S+2*i+1}], v{vVO}, s[{sWS}:{sWS+1}] offset:{o+1024} sc1")
        a(f"global_load_dwordx4 {q4(CB,i)}, v{vKO}, s[{sWS}:{sWS+1}] offset:{o} sc1")
    a(f"""
    s_lshl_b32 s{sTMP}, s{sPAIR}, 9
    s_add_u32 s{sOUT}, s{sOUT}, s{sTMP}
    s_addc_u32 s{sOUT+1}, s{sOUT+1}, 0
    v_bfe_u32 v{vT}, v0, 3, 1
    v_lshlrev_b32 v{vA}, 8, v{vT}
    v_lshrrev_b32 v{vT}, 4, v0
    v_lshl_add_u32 v{vA}, v{vT}, 6, v{vA}
    v_and_b32 v{vT}, 7, v0
    v_lshl_add_u32 v{vA}, v{vT}, 1, v{vA}
    s_waitcnt vmcnt(0)
    """)
    merge(S)
    a(f"""
    v_mov_b32 v{vT2}, v{vL}
    s_nop 1
    v_permlane16_swap_b32 v{vL}, v{vT2}
    v_add_f32 v{vL}, v{vL}, v{vT2}
    v_mov_b32 v{vT2}, v{vL}
    s_nop 1
    v_permlane32_swap_b32 v{vL}, v{vT2}
    v_add_f32 v{vL}, v{vL}, v{vT2}
    v_rcp_f32 v{vL}, v{vL}
    s_nop 0
    v_mul_f32 v{vO}, v{vO}, v{vL}
    v_mul_f32 v{vO+1}, v{vO+1}, v{vL}
    v_mul_f32 v{vO+2}, v{vO+2}, v{vL}
    v_mul_f32 v{vO+3}, v{vO+3}, v{vL}
    v_cvt_pk_bf16_f32 v{vO}, v{vO}, v{vO+1}
    v_cvt_pk_bf16_f32 v{vO+2}, v{vO+2}, v{vO+3}
    s_nop 0
    global_store_short v{vA}, v{vO}, s[{sOUT}:{sOUT+1}]
    global_store_short_d16_hi v{vA}, v{vO}, s[{sOUT}:{sOUT+1}] offset:16
    global_store_short v{vA}, v{vO+2}, s[{sOUT}:{sOUT+1}] offset:32
    global_store_short_d16_hi v{vA}, v{vO+2}, s[{sOUT}:{sOUT+1}] offset:48
L_end_{label}:
    s_endpgm
    """)
    lds = NW * 1536
    return dict(label=label, body=a.text(), grid=NWG, block=64 * NW, lds=lds, nvgpr=total, acc=acc_off, nsgpr=48)


def kernel_text(k):
    return f""".text
.globl {k['label']}
.p2align 8
.type {k['label']},@function
{k['label']}:
{k['body']}.section .rodata,"a"
.p2align 6
.amdhsa_kernel {k['label']}
  .amdhsa_next_free_vgpr {k['nvgpr']}
  .amdhsa_next_free_sgpr {k['nsgpr']}
  .amdhsa_accum_offset {k['acc']}
  .amdhsa_group_segment_fixed_size 0
  .amdhsa_kernarg_size 72
  .amdhsa_user_sgpr_count 2
  .amdhsa_user_sgpr_kernarg_segment_ptr 1
  .amdhsa_system_sgpr_workgroup_id_x 1
  .amdhsa_float_denorm_mode_32 3
.end_amdhsa_kernel
"""


def final_file(k):
    return (HEADER + f"; @launch grid=({k['grid']},1,1) block=({k['block']},1,1) lds={k['lds']}\n"
            + '.amdgcn_target "amdgcn-amd-amdhsa--gfx950"\n' + kernel_text(k))


def meta(ks):
    s = ".amdgpu_metadata\n---\namdhsa.version: [1, 2]\namdhsa.kernels:\n"
    for k in ks:
        s += f"""  - .name: {k['label']}
    .symbol: {k['label']}.kd
    .kernarg_segment_size: 72
    .kernarg_segment_align: 8
    .group_segment_fixed_size: 0
    .private_segment_fixed_size: 0
    .wavefront_size: 64
    .sgpr_count: {k['nsgpr']}
    .vgpr_count: {k['nvgpr']}
    .max_flat_workgroup_size: {k['block']}
    .args:
      - {{.name: kernargs, .size: 72, .offset: 0, .value_kind: by_value}}
"""
    return s + "...\n.end_amdgpu_metadata\n"


def bench_file(ks):
    return '.amdgcn_target "amdgcn-amd-amdhsa--gfx950"\n' + "".join(kernel_text(k) for k in ks) + meta(ks)


if __name__ == "__main__":
    k = gen(NAME + "_kernel")
    sys.stdout.write(final_file(k))
```

```python
import importlib, os, sys
from gen1 import NAME
mod = importlib.import_module(sys.argv[1])
os.makedirs("var", exist_ok=True)
for arg in sys.argv[2:]:
    name, _, kw = arg.partition(":")
    d = {}
    for item in filter(None, kw.split(",")):
        k, v = item.split("=")
        v = v.replace("+", " ")
        try:
            v = int(v)
        except ValueError:
            pass
        d[k] = v
    r = mod.gen(NAME + "_kernel", **d)
    open(f"var/{name}.s", "w").write(mod.final_file(r))
    print(f"var/{name}.s")
```

```python
import math
import struct
import sys

NAME = "standalone__tree_speculative_verify_tree_attention_over_candidate_token_tree__decode"

HEADER = """; Kernarg layout for this problem (72 bytes, ptrs only, base s[0:1]):
"""


def f32(x):
    return "0x%08x" % struct.unpack("<I", struct.pack("<f", x))[0]


class Asm:
    def __init__(self):
        self.lines = []

    def __call__(self, s):
        for ln in s.strip("\n").split("\n"):
            self.lines.append("    " + ln.strip() if not ln.strip().endswith(":") else ln.strip())

    def text(self):
        return "\n".join(self.lines) + "\n"


def gen(label, NW=8, S=8, NB=4, order="wg", kflags="nt", vflags="nt", wgmap="pairlow", stamp=False,
        compute=True, diag=0):
    W = NW * S
    T = 2048 // W
    assert T * W == 2048 and T >= NB
    NWG = 32 * S
    TILE = 4096
    if order == "pair":
        A, Bw, STEP = NW * TILE, TILE, W * TILE
    elif order == "wg":
        A, Bw, STEP = T * NW * TILE, TILE, NW * TILE
    elif order == "wave":
        A, Bw, STEP = T * NW * TILE, T * TILE, TILE
    else:
        raise ValueError(order)
    c_scale = (128 ** -0.5) * math.log2(math.e)

    vKO, vVO = 1, 2
    vO = 4
    vM, vL = 8, 9
    vT, vT2, vA, vN = 10, 11, 12, 13
    vS = 16
    CB = 20
    vQ = 20
    vMASK = 36
    vB = 40
    RING0 = 56
    ring_in_v = RING0 + 32 * NB <= 256
    ncomb = max(NW, S) * 6
    if ring_in_v:
        nv = max(RING0 + 32 * NB, CB + ncomb)
        acc_off = (nv + 3) // 4 * 4
        total = nv
    else:
        nv = max(RING0, CB + ncomb)
        acc_off = (nv + 3) // 4 * 4
        total = acc_off + 32 * NB
    assert total <= 512 and acc_off <= 256
    assert (512 // ((total + 7) // 8 * 8)) * 4 >= NW, "workgroup does not fit the register file"

    def ring(b, part, i):
        o = 32 * b + 16 * part + 4 * i
        return ("v[%d:%d]" % (RING0 + o, RING0 + o + 3)) if ring_in_v else ("a[%d:%d]" % (o, o + 3))

    def q4(base, i=0):
        return "v[%d:%d]" % (base + 4 * i, base + 4 * i + 3)

    sQ, sK, sV, sKT, sVT, sMK, sOUT, sDBG, sWS = 4, 6, 8, 10, 12, 14, 16, 18, 20
    sKD, sVD = 24, 28
    sPAIR, sSPLIT, sWAVE, sOFF, sC, sCNT, sTMP, sDES = 32, 33, 34, 35, 36, 37, 38, 39
    sT0 = 40

    a = Asm()
    a(f"""
    s_cmp_ge_u32 s2, {NWG}
    s_cbranch_scc1 L_end_{label}
    s_load_dwordx16 s[4:19], s[0:1], 0
    s_load_dwordx2 s[20:21], s[0:1], 64
    """)
    if stamp or diag:
        a(f"s_memrealtime s[{sT0}:{sT0+1}]")
    if wgmap == "pairlow":
        a(f"s_and_b32 s{sPAIR}, s2, 31\ns_lshr_b32 s{sSPLIT}, s2, 5")
    else:
        lg = int(math.log2(S))
        assert 1 << lg == S
        a(f"s_and_b32 s{sSPLIT}, s2, {S-1}\ns_lshr_b32 s{sPAIR}, s2, {lg}")
    a(f"""
    v_lshrrev_b32 v{vT}, 6, v0
    v_and_b32 v0, 63, v0
    v_readfirstlane_b32 s{sWAVE}, v{vT}
    v_and_b32 v{vT}, 15, v0
    v_lshrrev_b32 v{vT2}, 4, v0
    v_lshlrev_b32 v{vKO}, 8, v{vT}
    v_lshl_add_u32 v{vKO}, v{vT2}, 4, v{vKO}
    v_lshlrev_b32 v{vVO}, 10, v{vT2}
    v_lshl_add_u32 v{vVO}, v{vT}, 4, v{vVO}
    v_lshrrev_b32 v{vA}, 3, v{vT}
    v_lshlrev_b32 v{vA}, 8, v{vA}
    v_lshl_add_u32 v{vA}, v{vT2}, 4, v{vA}
    s_mul_i32 s{sOFF}, s{sSPLIT}, {A}
    s_mul_i32 s{sTMP}, s{sWAVE}, {Bw}
    s_add_u32 s{sOFF}, s{sOFF}, s{sTMP}
    s_or_b32 s{sDES}, s{sSPLIT}, s{sWAVE}
    s_lshl_b32 s{sTMP}, s{sPAIR}, 23
    s_mov_b32 s{sKD+2}, 0x800000
    s_mov_b32 s{sKD+3}, 0x20000
    s_mov_b32 s{sVD+2}, 0x800000
    s_mov_b32 s{sVD+3}, 0x20000
    s_lshl_b32 s{sCNT}, s{sPAIR}, 9
    s_waitcnt lgkmcnt(0)
    s_add_u32 s{sKD}, s{sK}, s{sTMP}
    s_addc_u32 s{sKD+1}, s{sK+1}, 0
    s_add_u32 s{sVD}, s{sV}, s{sTMP}
    s_addc_u32 s{sVD+1}, s{sV+1}, 0
    s_add_u32 s{sQ}, s{sQ}, s{sCNT}
    s_addc_u32 s{sQ+1}, s{sQ+1}, 0
    """)
    for i in range(4):
        a(f"global_load_dwordx4 {q4(vQ, i)}, v{vA}, s[{sQ}:{sQ+1}] offset:{64*i}")
    a(f"""
    s_cmp_lg_u32 s{sDES}, 0
    s_cbranch_scc1 L_ring_{label}
    s_lshl_b32 s{sTMP}, s{sPAIR}, 8
    s_add_u32 s{sKT}, s{sKT}, s{sTMP}
    s_addc_u32 s{sKT+1}, s{sKT+1}, 0
    s_add_u32 s{sVT}, s{sVT}, s{sTMP}
    s_addc_u32 s{sVT+1}, s{sVT+1}, 0
    s_lshr_b32 s{sTMP}, s{sPAIR}, 4
    s_lshl_b32 s{sTMP}, s{sTMP}, 1
    v_lshlrev_b32 v{vA}, 4, v{vT2}
    v_and_b32 v{vM}, 7, v0
    v_lshlrev_b32 v{vM}, 1, v{vM}
    v_lshl_add_u32 v{vM}, v{vT2}, 6, v{vM}
    v_mov_b32 v{vL}, s{sTMP}
    """)
    for i in range(4):
        a(f"global_load_dwordx4 {q4(vB, i)}, v{vA}, s[{sKT}:{sKT+1}] offset:{64*i}")
    for r in range(4):
        a(f"global_load_ushort v{vO+r}, v{vM}, s[{sVT}:{sVT+1}] offset:{16*r}")
    a(f"global_load_ushort v{vN}, v{vL}, s[{sMK}:{sMK+1}]")
    a(f"L_ring_{label}:")

    def issueK(b):
        for i in range(4):
            a(f"buffer_load_dwordx4 {ring(b,0,i)}, v{vKO}, s[{sKD}:{sKD+3}], s{sOFF} offen offset:{64*i} {kflags}")

    def issueV(b):
        for r in range(4):
            a(f"buffer_load_dwordx4 {ring(b,1,r)}, v{vVO}, s[{sVD}:{sVD+3}], s{sOFF} offen offset:{256*r} {vflags}")
        a(f"s_add_u32 s{sOFF}, s{sOFF}, {STEP}")

    for b in range(NB):
        issueK(b)
        issueV(b)
    a(f"""
    s_mov_b32 s{sC}, {f32(c_scale)}
    v_and_b32 v{vT}, 1, v0
    v_lshlrev_b32 v{vT}, 4, v{vT}
    v_mov_b32 v{vA}, 0xffff
    v_lshlrev_b32 v{vA}, v{vT}, v{vA}
    v_bfe_u32 v{vT}, v0, 1, 2
    """)
    for r in range(4):
        a(f"v_cmp_eq_u32 vcc, {r}, v{vT}\ns_nop 1\nv_cndmask_b32 v{vMASK+r}, 0, v{vA}, vcc")
    a(f"""
    s_cmp_lg_u32 s{sDES}, 0
    s_cbranch_scc1 L_plain_{label}
    s_waitcnt vmcnt({8*NB})
    v_mfma_f32_16x16x32_bf16 {q4(vS)}, {q4(vB,0)}, {q4(vQ,0)}, 0
    v_mfma_f32_16x16x32_bf16 {q4(vS)}, {q4(vB,1)}, {q4(vQ,1)}, {q4(vS)}
    v_mfma_f32_16x16x32_bf16 {q4(vS)}, {q4(vB,2)}, {q4(vQ,2)}, {q4(vS)}
    v_mfma_f32_16x16x32_bf16 {q4(vS)}, {q4(vB,3)}, {q4(vQ,3)}, {q4(vS)}
    v_lshlrev_b32 v{vO}, 16, v{vO}
    v_lshlrev_b32 v{vO+1}, 16, v{vO+1}
    v_lshlrev_b32 v{vO+2}, 16, v{vO+2}
    v_lshlrev_b32 v{vO+3}, 16, v{vO+3}
    v_lshlrev_b32 v{vN}, 16, v{vN}
    v_sub_f32 v{vN}, 1.0, v{vN}
    v_mul_f32 v{vN}, {f32(-1e9*math.log2(math.e))}, v{vN}
    v_cmp_gt_u32 vcc, 16, v0
    s_nop 1
    v_cndmask_b32 v{vL}, 0, 1.0, vcc
    v_fma_f32 v{vM}, v{vS}, s{sC}, v{vN}
    s_branch L_main_{label}
L_plain_{label}:
    v_mov_b32 v{vM}, 0xff800000
    v_mov_b32 v{vL}, 0
    v_mov_b32 v{vO}, 0
    v_mov_b32 v{vO+1}, 0
    v_mov_b32 v{vO+2}, 0
    v_mov_b32 v{vO+3}, 0
L_main_{label}:
    """)

    def tile(b, reissue, waitK, waitV):
        a(f"s_waitcnt vmcnt({waitK})")
        if not compute:
            if reissue:
                issueK(b)
            a(f"s_waitcnt vmcnt({waitV})")
            if reissue:
                issueV(b)
            return
        for i in range(4):
            c = "0" if i == 0 else q4(vS)
            a(f"v_mfma_f32_16x16x32_bf16 {q4(vS)}, {ring(b,0,i)}, {q4(vQ,i)}, {c}")
        if reissue:
            issueK(b)
            a("s_nop 3")
        else:
            a("s_nop 7")
        a(f"""
        v_max3_f32 v{vT}, v{vS}, v{vS+1}, v{vS+2}
        v_max_f32 v{vT}, v{vT}, v{vS+3}
        v_mov_b32 v{vT2}, v{vT}
        s_nop 1
        v_permlane16_swap_b32 v{vT}, v{vT2}
        v_max_f32 v{vT}, v{vT}, v{vT2}
        v_mov_b32 v{vT2}, v{vT}
        s_nop 1
        v_permlane32_swap_b32 v{vT}, v{vT2}
        v_max_f32 v{vT}, v{vT}, v{vT2}
        v_mul_f32 v{vT}, s{sC}, v{vT}
        v_max_f32 v{vN}, v{vM}, v{vT}
        v_sub_f32 v{vA}, v{vM}, v{vN}
        v_exp_f32 v{vA}, v{vA}
        v_mov_b32 v{vM}, v{vN}
        """)
        for r in range(4):
            a(f"v_fma_f32 v{vS+r}, v{vS+r}, s{sC}, -v{vN}")
        for r in range(4):
            a(f"v_exp_f32 v{vS+r}, v{vS+r}")
        for r in range(4):
            a(f"v_mul_f32 v{vO+r}, v{vO+r}, v{vA}")
        a(f"v_fma_f32 v{vL}, v{vL}, v{vA}, v{vS}")
        for r in range(1, 4):
            a(f"v_add_f32 v{vL}, v{vL}, v{vS+r}")
        for r in range(4):
            a(f"v_cvt_pk_bf16_f32 v{vS+r}, v{vS+r}, v{vS+r}")
        for r in range(4):
            for j in range(4):
                a(f"v_and_b32 v{vB+4*r+j}, v{vMASK+j}, v{vS+r}")
        a(f"s_waitcnt vmcnt({waitV})\ns_nop 0")
        for r in range(4):
            a(f"v_mfma_f32_16x16x32_bf16 {q4(vO)}, {ring(b,1,r)}, {q4(vB,r)}, {q4(vO)}")
        if reissue:
            issueV(b)

    L = (T - NB) // NB
    R = (T - NB) % NB
    steady = 8 * NB - 4
    if L > 0:
        a(f"s_mov_b32 s{sCNT}, {L}\nL_loop_{label}:")
        for b in range(NB):
            tile(b, True, steady, steady)
        a(f"s_sub_u32 s{sCNT}, s{sCNT}, 1\ns_cmp_lg_u32 s{sCNT}, 0\ns_cbranch_scc1 L_loop_{label}")
    for b in range(R):
        tile(b, True, steady, steady)
    for k in range(NB):
        left = NB - k
        tile((R + k) % NB, False, 8 * left - 4, 8 * left - 8)

    a(f"""
    s_mul_i32 s{sTMP}, s{sWAVE}, 1536
    v_lshlrev_b32 v{vKO}, 4, v0
    v_lshlrev_b32 v{vVO}, 3, v0
    v_add_u32 v{vT}, s{sTMP}, v{vKO}
    v_add_u32 v{vT2}, s{sTMP}, v{vVO}
    s_nop 4
    ds_write_b128 v{vT}, {q4(vO)}
    ds_write_b64 v{vT2}, v[{vM}:{vL}] offset:1024
    s_waitcnt lgkmcnt(0)
    s_barrier
    s_cmp_lg_u32 s{sWAVE}, 0
    s_cbranch_scc1 L_end_{label}
    """)

    def merge(n):
        ML = CB + 4 * n
        a(f"v_mov_b32 v{vM}, v{ML}")
        for i in range(1, n):
            a(f"v_max_f32 v{vM}, v{vM}, v{ML+2*i}")
        for i in range(n):
            a(f"v_sub_f32 v{ML+2*i}, v{ML+2*i}, v{vM}")
        for i in range(n):
            a(f"v_exp_f32 v{ML+2*i}, v{ML+2*i}")
        a("s_nop 0")
        a(f"v_mul_f32 v{vL}, v{ML}, v{ML+1}")
        for r in range(4):
            a(f"v_mul_f32 v{vO+r}, v{ML}, v{CB+r}")
        for i in range(1, n):
            a(f"v_fmac_f32 v{vL}, v{ML+2*i}, v{ML+2*i+1}")
            for r in range(4):
                a(f"v_fmac_f32 v{vO+r}, v{ML+2*i}, v{CB+4*i+r}")

    if NW > 1:
        for i in range(NW):
            a(f"ds_read_b64 v[{CB+4*NW+2*i}:{CB+4*NW+2*i+1}], v{vVO} offset:{1536*i+1024}")
        for i in range(NW):
            a(f"ds_read_b128 {q4(CB,i)}, v{vKO} offset:{1536*i}")
        a("s_waitcnt lgkmcnt(0)")
        merge(NW)
    a(f"""
    s_mul_i32 s{sTMP}, s{sPAIR}, {S*2048}
    s_add_u32 s{sWS}, s{sWS}, s{sTMP}
    s_addc_u32 s{sWS+1}, s{sWS+1}, 0
    s_lshl_b32 s{sTMP}, s{sSPLIT}, 11
    v_add_u32 v{vT}, s{sTMP}, v{vKO}
    v_add_u32 v{vT2}, s{sTMP}, v{vVO}
    global_store_dwordx4 v{vT}, {q4(vO)}, s[{sWS}:{sWS+1}] sc1
    global_store_dwordx2 v{vT2}, v[{vM}:{vL}], s[{sWS}:{sWS+1}] offset:1024 sc1
    s_lshl_b32 s{sTMP}, s{sPAIR}, 2
    s_add_u32 s{sTMP}, s{sTMP}, {64 if diag else 0}
    v_mov_b32 v{vA}, s{sTMP}
    v_mov_b32 v{vN}, 1
    s_mov_b64 exec, 1
    s_waitcnt vmcnt(0)
    global_atomic_add v{vN}, v{vA}, v{vN}, s[{sDBG}:{sDBG+1}] sc0
    s_waitcnt vmcnt(0)
    v_readfirstlane_b32 s{sTMP}, v{vN}
    s_mov_b64 exec, -1
    """)
    if stamp:
        a(f"""
        s_memrealtime s[{sT0+2}:{sT0+3}]
        s_getreg_b32 s{sT0+4}, hwreg(HW_REG_XCC_ID)
        s_getreg_b32 s{sT0+5}, hwreg(HW_REG_HW_ID)
        s_load_dwordx2 s[{sT0+6}:{sT0+7}], s[0:1], 64
        s_waitcnt lgkmcnt(0)
        v_mov_b32 v{vS}, s{sT0}
        v_mov_b32 v{vS+1}, s{sT0+2}
        v_mov_b32 v{vS+2}, s{sT0+4}
        v_mov_b32 v{vS+3}, s{sT0+5}
        s_lshl_b32 s{sT0}, s2, 4
        s_add_u32 s{sT0}, s{sT0}, 0x1000000
        v_mov_b32 v{vA}, s{sT0}
        s_mov_b64 exec, 1
        global_store_dwordx4 v{vA}, {q4(vS)}, s[{sT0+6}:{sT0+7}]
        s_mov_b64 exec, -1
        """)
    if diag == 1:
        a(f"""
        s_memrealtime s[{sT0+2}:{sT0+3}]
        s_waitcnt lgkmcnt(0)
        s_not_b32 s{sT0+4}, s{sT0}
        s_atomic_umax s{sT0+4}, s[{sDBG}:{sDBG+1}], 0
        s_atomic_umax s{sT0}, s[{sDBG}:{sDBG+1}], 4
        s_not_b32 s{sT0+5}, s{sT0+2}
        s_atomic_umax s{sT0+5}, s[{sDBG}:{sDBG+1}], 8
        s_atomic_umax s{sT0+2}, s[{sDBG}:{sDBG+1}], 12
        s_waitcnt lgkmcnt(0)
        """)
    if diag > 1:
        a(f"""
L_spin_{label}:
        s_memrealtime s[{sT0+2}:{sT0+3}]
        s_waitcnt lgkmcnt(0)
        s_sub_u32 s{sT0+2}, s{sT0+2}, s{sT0}
        s_cmp_lt_u32 s{sT0+2}, {diag}
        s_cbranch_scc1 L_spin_{label}
        """)
    a(f"""
    s_cmp_lg_u32 s{sTMP}, {S-1}
    s_cbranch_scc1 L_end_{label}
    """)
    for i in range(S):
        off = 2048 * i
        if off + 1024 > 4095 and i % 2 == 0:
            a(f"v_add_u32 v{vVO}, 4096, v{vVO}\nv_add_u32 v{vKO}, 4096, v{vKO}")
        o = off % 4096
        a(f"global_load_dwordx2 v[{CB+4*S+2*i}:{CB+4*S+2*i+1}], v{vVO}, s[{sWS}:{sWS+1}] offset:{o+1024} sc1")
        a(f"global_load_dwordx4 {q4(CB,i)}, v{vKO}, s[{sWS}:{sWS+1}] offset:{o} sc1")
    a(f"""
    s_lshl_b32 s{sTMP}, s{sPAIR}, 9
    s_add_u32 s{sOUT}, s{sOUT}, s{sTMP}
    s_addc_u32 s{sOUT+1}, s{sOUT+1}, 0
    v_bfe_u32 v{vT}, v0, 3, 1
    v_lshlrev_b32 v{vA}, 8, v{vT}
    v_lshrrev_b32 v{vT}, 4, v0
    v_lshl_add_u32 v{vA}, v{vT}, 6, v{vA}
    v_and_b32 v{vT}, 7, v0
    v_lshl_add_u32 v{vA}, v{vT}, 1, v{vA}
    s_waitcnt vmcnt(0)
    """)
    merge(S)
    a(f"""
    v_mov_b32 v{vT2}, v{vL}
    s_nop 1
    v_permlane16_swap_b32 v{vL}, v{vT2}
    v_add_f32 v{vL}, v{vL}, v{vT2}
    v_mov_b32 v{vT2}, v{vL}
    s_nop 1
    v_permlane32_swap_b32 v{vL}, v{vT2}
    v_add_f32 v{vL}, v{vL}, v{vT2}
    v_rcp_f32 v{vL}, v{vL}
    s_nop 0
    v_mul_f32 v{vO}, v{vO}, v{vL}
    v_mul_f32 v{vO+1}, v{vO+1}, v{vL}
    v_mul_f32 v{vO+2}, v{vO+2}, v{vL}
    v_mul_f32 v{vO+3}, v{vO+3}, v{vL}
    v_cvt_pk_bf16_f32 v{vO}, v{vO}, v{vO+1}
    v_cvt_pk_bf16_f32 v{vO+2}, v{vO+2}, v{vO+3}
    s_nop 0
    global_store_short v{vA}, v{vO}, s[{sOUT}:{sOUT+1}]
    global_store_short_d16_hi v{vA}, v{vO}, s[{sOUT}:{sOUT+1}] offset:16
    global_store_short v{vA}, v{vO+2}, s[{sOUT}:{sOUT+1}] offset:32
    global_store_short_d16_hi v{vA}, v{vO+2}, s[{sOUT}:{sOUT+1}] offset:48
L_end_{label}:
    s_endpgm
    """)
    lds = NW * 1536
    return dict(label=label, body=a.text(), grid=NWG, block=64 * NW, lds=lds, nvgpr=total, acc=acc_off, nsgpr=48)


def kernel_text(k):
    return f""".text
.globl {k['label']}
.p2align 8
.type {k['label']},@function
{k['label']}:
{k['body']}.section .rodata,"a"
.p2align 6
.amdhsa_kernel {k['label']}
  .amdhsa_next_free_vgpr {k['nvgpr']}
  .amdhsa_next_free_sgpr {k['nsgpr']}
  .amdhsa_accum_offset {k['acc']}
  .amdhsa_group_segment_fixed_size 0
  .amdhsa_kernarg_size 72
  .amdhsa_user_sgpr_count 2
  .amdhsa_user_sgpr_kernarg_segment_ptr 1
  .amdhsa_system_sgpr_workgroup_id_x 1
  .amdhsa_float_denorm_mode_32 3
.end_amdhsa_kernel
"""


def final_file(k):
    return (HEADER + f"; @launch grid=({k['grid']},1,1) block=({k['block']},1,1) lds={k['lds']}\n"
            + '.amdgcn_target "amdgcn-amd-amdhsa--gfx950"\n' + kernel_text(k))


def meta(ks):
    s = ".amdgpu_metadata\n---\namdhsa.version: [1, 2]\namdhsa.kernels:\n"
    for k in ks:
        s += f"""  - .name: {k['label']}
    .symbol: {k['label']}.kd
    .kernarg_segment_size: 72
    .kernarg_segment_align: 8
    .group_segment_fixed_size: 0
    .private_segment_fixed_size: 0
    .wavefront_size: 64
    .sgpr_count: {k['nsgpr']}
    .vgpr_count: {k['nvgpr']}
    .max_flat_workgroup_size: {k['block']}
    .args:
      - {{.name: kernargs, .size: 72, .offset: 0, .value_kind: by_value}}
"""
    return s + "...\n.end_amdgpu_metadata\n"


def bench_file(ks):
    return '.amdgcn_target "amdgcn-amd-amdhsa--gfx950"\n' + "".join(kernel_text(k) for k in ks) + meta(ks)


if __name__ == "__main__":
    k = gen(NAME + "_kernel")
    sys.stdout.write(final_file(k))
```

```python
def diag_tail(a, label, sDBG, s_t0, s_x, tmp, mode, nwg_log2=8):
    now, mn, x = tmp, tmp + 2, tmp + 3

    def spin(tag, base, limit):
        a(f"""
L_dg{tag}_{label}:
        s_memrealtime s[{now}:{now+1}]
        s_waitcnt lgkmcnt(0)
        s_sub_u32 s{now}, s{now}, s{base}
        s_cmp_lt_u32 s{now}, {limit}
        s_cbranch_scc1 L_dg{tag}_{label}
        """)

    a("s_waitcnt vmcnt(0) lgkmcnt(0)")
    spin(0, s_t0, 11000)
    a(f"s_not_b32 s{mn}, s{s_t0}\ns_atomic_umax s{mn}, s[{sDBG}:{sDBG+1}], 240\ns_waitcnt lgkmcnt(0)")
    spin(1, s_t0, 13500)
    a(f"""
    s_mov_b32 s{mn}, 0
    s_atomic_add s{mn}, s[{sDBG}:{sDBG+1}], 240 glc
    s_waitcnt lgkmcnt(0)
    s_not_b32 s{mn}, s{mn}
    s_sub_u32 s{x}, s{s_x}, s{mn}
    s_min_u32 s{x}, s{x}, 20000
    """)
    if mode in ("xcc", "xrnd", "rot"):
        a(f"""
        s_getreg_b32 s{x}, hwreg(HW_REG_XCC_ID)
        s_sub_u32 s{x}, s{x}, s2
        s_and_b32 s{x}, s{x}, 7
        """)
        if mode == "rot":
            a(f"s_mul_i32 s{x}, s{x}, 1000\ns_atomic_add s{x}, s[{sDBG}:{sDBG+1}], 244")
        elif mode == "xcc":
            a(f"s_cselect_b32 s{x}, 5000, 0\ns_atomic_add s{x}, s[{sDBG}:{sDBG+1}], 244")
        else:
            a(f"s_cselect_b32 s{now}, 10000, 0\ns_mul_i32 s{x}, s{mn}, 0x9e3779b1\ns_lshr_b32 s{x}, s{x}, 20\n"
              f"s_max_u32 s{x}, s{x}, s{now}\ns_atomic_umax s{x}, s[{sDBG}:{sDBG+1}], 244")
    if mode == "max":
        a(f"s_atomic_umax s{x}, s[{sDBG}:{sDBG+1}], 244")
    elif mode == "min":
        a(f"s_not_b32 s{x}, s{x}\ns_atomic_umax s{x}, s[{sDBG}:{sDBG+1}], 244")
    elif mode == "mean":
        a(f"s_atomic_add s{x}, s[{sDBG}:{sDBG+1}], 244")
    a("s_waitcnt lgkmcnt(0)")
    spin(2, mn, 17500)
    a(f"s_mov_b32 s{x}, 0\ns_atomic_add s{x}, s[{sDBG}:{sDBG+1}], 244 glc\ns_waitcnt lgkmcnt(0)")
    if mode == "min":
        a(f"s_not_b32 s{x}, s{x}")
    if mode in ("mean", "xcc", "rot"):
        a(f"s_lshr_b32 s{x}, s{x}, {nwg_log2}")
    a(f"s_min_u32 s{x}, s{x}, 20000\ns_add_u32 s{x}, s{x}, 20000")
    spin(3, mn, f"s{x}")
```

```python
import math
import sys

from diag import diag_tail
from gen1 import Asm, NAME, bench_file, f32, final_file, kernel_text, meta

WS_CTR = 0x100000
WS_STAMP = 0x1000000


NAMES = list("ABCDEFGH") + ["w0", "w1", "b", "t0", "t1", "t2", "t3", "t4", "r0", "r1", "r2", "r3"]
MAPS = {
    "v3": "A=14 B=21 C=22 w0=13 w1=15 b=16 t0=17 t1=18 t2=14^19 t3=20 t4=12",
    "k2": "A=22 B=13^21 C=14 G=13^14 w0=16 w1=15 b=13 t0=20 t1=18 t2=17 t3=14^19 t4=12",
    "k3": "A=22 B=13^21 C=14 G=13^14 w0=16 w1=15 b=13 t0=17 t1=18 t2=14^19 t3=20 t4=12",
    "k7": "A=22 B=13^21 C=14 G=13^14 w0=16 w1=15 b=13 t0=12 t1=18 t2=17 t3=14^19 t4=20",
    "m1": "A=22 B=13^21 C=14 D=14^19 G=13^14 w0=16 w1=11 b=13 t0=20 t1=18 t2=17 t3=14^19 t4=12 r3=15",
    "n1": "A=11^18 B=10 C=10^14 D=8^9^11 F=11^12 G=8^10^11^12^14 H=8^9^12^13^21 w0=9^13 w1=8^15 b=9^13^21 t0=8^12 t1=8^22 t2=10^14^19 t3=8^12^20 t4=10^17 r0=9^16 r1=11 r2=15 r3=9",
    "n2": "A=8^22 B=9^13^21 C=10^14 E=10 F=11 G=9^10^13^14 w0=8^12 w1=8^15 b=9^13 t0=10^17 t1=8^11^15^18 t2=10^14^19 t3=10^14^19^20 t4=8^9^11^15^18 r0=9^16 r1=9^11^16 r2=17 r3=8^10^17",
    "u1": "A=22 B=13^21 C=12 D=14 G=13^14 H=12 w0=16 w1=15 b=13 t0=17 t1=18 t2=14^19 t3=12^20 t4=14",
    "u2": "A=22 B=13^21 C=12 D=14 G=13^14 H=12 w0=16 w1=11 b=13 t0=17 t1=18 t2=14^19 t3=12^20 t4=14 r3=15",
    "u3": "A=22 B=13^21 C=12 D=14 G=13^14 w0=16 w1=9 b=13 t0=17 t1=18 t2=14^19 t3=12^20 t4=14 r1=15",
    "m2": "A=9 B=11 C=14 D=14^18^19 G=13^14 H=16 w0=13^21 w1=16 b=13 t0=20^22 t1=22 t2=17 t3=14^19 t4=18 r1=12 r3=15",
}


def parse_map(text):
    d = {"r0": "8", "r1": "9", "r2": "10", "r3": "11"}
    d.update(x.split("=") for x in text.split())
    w = {n: sum(1 << int(b) for b in d[n].split("^") if int(b) < 23) if n in d else 0 for n in NAMES}
    basis = []
    for n in ["A", "B", "C"] + NAMES[8:]:
        v = w[n]
        for x in basis:
            v = min(v, v ^ x)
        assert v, "map is not invertible"
        basis.append(v)
    return w


def gen(label, NB=2, TS=60, LEAD=2, N3=0, N2=0, amap="k2", kflags="nt", vflags="nt", stamp=0, pf=0,
        sbar=1, warm=0, compute=1, diag="", cstr=256, drain=1, table=0, swap=0):
    NW, S = 4, 8
    NP = NW + 1
    NWG = 32 * S
    if diag:
        stamp = 1
    NT = 512 - S * TS
    assert NT >= 0 and TS > NB + LEAD and 3 * N3 + 2 * N2 <= NT or NT == 0
    W = parse_map(MAPS.get(amap, amap))
    UNIT = ["A", "B", "C", "b", "t0", "t1", "t2", "t3", "t4"]
    sW = 80
    rows = [W["r%d" % j] for j in range(4)]
    plain = all(v & (v - 1) == 0 for v in rows) and all(W[n] & sum(rows) == 0 for n in NAMES[:16])
    gx = table or not plain
    vimm = not gx and W["r0"] + W["r1"] < 4096

    def wt(n):
        if table:
            i = NAMES.index(n)
            return f"s{sW + i + (1 if i >= 16 else 0)}"
        return f"{W[n]:#x}"

    c_scale = (128 ** -0.5) * math.log2(math.e)

    vKO, vVO = 1, 2
    vO = 4
    vM, vL = 8, 9
    vT, vT2, vA, vN = 10, 11, 12, 13
    vZ, vPF = 14, 15
    vV1, vV2, vV3 = 3, 15, 14
    vS = 16
    CB = 20
    vQ = 20
    vMASK = 36
    vB = 40
    RING0 = 56
    assert CB + NP * 6 <= RING0
    vAD = RING0 + 32 * NB
    nv = max(vAD + (5 if gx else 0), CB + S * 6)
    assert nv <= 256

    def ring(b, part, i):
        o = RING0 + 32 * b + 16 * part + 4 * i
        return "v[%d:%d]" % (o, o + 3)

    def q4(base, i=0):
        return "v[%d:%d]" % (base + 4 * i, base + 4 * i + 3)

    sQ, sK, sV, sKT, sVT, sMK, sOUT, sDBG, sWS = 4, 6, 8, 10, 12, 14, 16, 18, 20
    sRET = 22
    sKD, sVD = 24, 28
    sPAIR, sU, sWAVE, sOFF, sC, sREM, sTMP, sP9 = 32, 33, 34, 35, 36, 37, 38, 39
    sSTATE, sASK, sTK, sSTR, sFLAG, sTM2, sPAR, sWB = 40, 41, 42, 43, 44, 45, 46, 47
    sPC = 48
    sCTR = 50
    sT = 52
    L = label
    TKL = NP * 1536
    a = Asm()

    def st(i):
        if stamp:
            a(f"s_memrealtime s[{sT+2*i}:{sT+2*i+1}]")

    def xor_bits(dst, init, src, names):
        cur = init
        for j, n in enumerate(names):
            if not table and W[n] == 0:
                continue
            a(f"s_bitcmp1_b32 s{src}, {j}")
            if cur is None:
                a(f"s_cselect_b32 s{dst}, {wt(n)}, 0")
            else:
                a(f"s_cselect_b32 s{sTMP}, {wt(n)}, 0\ns_xor_b32 s{dst}, s{cur}, s{sTMP}")
            cur = dst

    def unit_to_off(only_split=False):
        xor_bits(sOFF, sWB, sU, UNIT[:3] if only_split else UNIT)
        if table:
            a(f"s_and_b32 s{sOFF}, s{sOFF}, 0x7fff00")

    a(f"""
    s_cmp_ge_u32 s2, {NWG}
    s_cbranch_scc1 L_end_{L}
    s_load_dwordx16 s[4:19], s[0:1], 0
    s_load_dwordx2 s[20:21], s[0:1], 64
    """)
    st(0)
    swap_code = ""
    if swap:
        swap_code = (f"s_lshr_b32 s{sTMP}, s2, 1\ns_xor_b32 s{sTMP}, s{sTMP}, s2\ns_and_b32 s{sTMP}, s{sTMP}, 4\n"
                     f"s_mul_i32 s{sTMP}, s{sTMP}, 3\ns_xor_b32 s2, s2, s{sTMP}")
    a(f"""
    v_lshrrev_b32 v{vN}, 6, v0
    {swap_code}
    s_and_b32 s{sU}, s2, 7
    s_lshr_b32 s{sPAIR}, s2, 3
    v_readfirstlane_b32 s{sWAVE}, v{vN}
    v_and_b32 v{vT}, 15, v0
    v_bfe_u32 v{vT2}, v0, 4, 2
    s_lshl_b32 s{sP9}, s{sPAIR}, 9
    v_lshrrev_b32 v{vA}, 3, v{vT}
    v_lshl_add_u32 v{vA}, v{vA}, 8, s{sP9}
    v_lshl_add_u32 v{vA}, v{vT2}, 4, v{vA}
    s_cmp_eq_u32 s{sWAVE}, {NW}
    s_cbranch_scc1 L_help_{L}
    """)
    if table:
        a(f"""
        s_waitcnt lgkmcnt(0)
        s_load_dwordx16 s[{sW}:{sW+15}], s[{sDBG}:{sDBG+1}], 64
        s_load_dwordx4 s[{sW+16}:{sW+19}], s[{sDBG}:{sDBG+1}], 128
        s_load_dword s{sW+20}, s[{sDBG}:{sDBG+1}], 144
        s_waitcnt lgkmcnt(0)
        """)
    xor_bits(sWB, None, sWAVE, ["w0", "w1"])
    xor_bits(sWB, sWB, sPAIR, list("DEFGH"))
    if gx:
        a(f"v_lshlrev_b32 v{vKO}, 4, v{vT2}\nv_lshlrev_b32 v{vVO}, 4, v{vT}")
        for j in range(4):
            a(f"v_bfe_i32 v{vZ}, v0, {j}, 1\nv_and_b32 v{vZ}, {wt('r%d' % j)}, v{vZ}\nv_xor_b32 v{vKO}, v{vKO}, v{vZ}")
        for j in range(2):
            a(f"v_bfe_i32 v{vZ}, v0, {4+j}, 1\nv_and_b32 v{vZ}, {wt('r%d' % (2+j))}, v{vZ}\nv_xor_b32 v{vVO}, v{vVO}, v{vZ}")
    else:
        def scatter(dst, src_lo, names):
            j = 0
            while j < len(names):
                n = 1
                while j + n < len(names) and W[names[j + n]] == W[names[j]] << n:
                    n += 1
                a(f"v_bfe_u32 v{vZ}, v0, {src_lo + j}, {n}")
                a(f"v_lshl_add_u32 v{dst}, v{vZ}, {W[names[j]].bit_length() - 1}, v{dst}")
                j += n
        a(f"v_lshlrev_b32 v{vKO}, 4, v{vT2}\nv_lshlrev_b32 v{vVO}, 4, v{vT}")
        scatter(vKO, 0, ["r0", "r1", "r2", "r3"])
        scatter(vVO, 4, ["r2", "r3"])
    if not vimm:
        a(f"v_xor_b32 v{vV1}, {wt('r0')}, v{vVO}\nv_xor_b32 v{vV2}, {wt('r1')}, v{vVO}\nv_xor_b32 v{vV3}, {wt('r1')}, v{vV1}")
    unit_to_off(True)
    a(f"""
    s_lshl_b32 s{sTMP}, s{sPAIR}, 23
    s_mov_b32 s{sKD+2}, 0x800000
    s_mov_b32 s{sKD+3}, 0x20000
    s_mov_b32 s{sVD+2}, 0x800000
    s_mov_b32 s{sVD+3}, 0x20000
    s_waitcnt lgkmcnt(0)
    s_add_u32 s{sKD}, s{sK}, s{sTMP}
    s_addc_u32 s{sKD+1}, s{sK+1}, 0
    s_add_u32 s{sVD}, s{sV}, s{sTMP}
    s_addc_u32 s{sVD+1}, s{sV+1}, 0
    """)
    st(1)

    def addrK():
        if gx:
            a(f"v_xor_b32 v{vAD}, s{sOFF}, v{vKO}")

    def addrV():
        if gx:
            for r in range(4):
                a(f"v_xor_b32 v{vAD+1+r}, s{sOFF}, v{[vVO,vV1,vV2,vV3][r]}")

    def issueK(b):
        if gx:
            for i in range(4):
                a(f"buffer_load_dwordx4 {ring(b,0,i)}, v{vAD}, s[{sKD}:{sKD+3}], 0 offen offset:{64*i} {kflags}")
            return
        for i in range(4):
            a(f"buffer_load_dwordx4 {ring(b,0,i)}, v{vKO}, s[{sKD}:{sKD+3}], s{sOFF} offen offset:{64*i} {kflags}")

    def issueV(b):
        for r in range(4):
            if gx:
                a(f"buffer_load_dwordx4 {ring(b,1,r)}, v{vAD+1+r}, s[{sVD}:{sVD+3}], 0 offen {vflags}")
            elif vimm:
                o = (r & 1) * W["r0"] + (r >> 1) * W["r1"]
                a(f"buffer_load_dwordx4 {ring(b,1,r)}, v{vVO}, s[{sVD}:{sVD+3}], s{sOFF} offen offset:{o} {vflags}")
            else:
                a(f"buffer_load_dwordx4 {ring(b,1,r)}, v{[vVO,vV1,vV2,vV3][r]}, s[{sVD}:{sVD+3}], s{sOFF} offen {vflags}")

    for i in range(4):
        a(f"global_load_dwordx4 {q4(vQ, i)}, v{vA}, s[{sQ}:{sQ+1}] offset:{64*i}")
    for b in range(NB):
        for j in range(3):
            if b and (b ^ (b - 1)) >> j & 1:
                a(f"s_xor_b32 s{sOFF}, s{sOFF}, {wt(UNIT[3 + j])}")
        addrK()
        issueK(b)
        addrV()
        issueV(b)
    a(f"""
    s_add_u32 s{sU}, s{sU}, {8*NB}
    s_mov_b32 s{sSTR}, 8
    s_mul_i32 s{sTMP}, s{sPAIR}, {cstr}
    s_add_u32 s{sTMP}, s{sTMP}, {WS_CTR}
    s_add_u32 s{sCTR}, s{sWS}, s{sTMP}
    s_addc_u32 s{sCTR+1}, s{sWS+1}, 0
    s_mov_b32 s{sSTATE}, 0
    s_mov_b32 s{sPAR}, 0
    s_mov_b32 s{sREM}, {TS - NB - LEAD}
    s_cmp_eq_u32 s{sWAVE}, 0
    s_cselect_b32 s{sASK}, 0, -1
    s_mov_b32 s{sC}, {f32(c_scale)}
    v_and_b32 v0, 63, v0
    v_mov_b32 v{vM}, 0xff800000
    v_mov_b32 v{vL}, 0
    v_mov_b32 v{vO}, 0
    v_mov_b32 v{vO+1}, 0
    v_mov_b32 v{vO+2}, 0
    v_mov_b32 v{vO+3}, 0
    v_and_b32 v{vT}, 1, v0
    v_lshlrev_b32 v{vT}, 4, v{vT}
    v_mov_b32 v{vA}, 0xffff
    v_lshlrev_b32 v{vA}, v{vT}, v{vA}
    v_bfe_u32 v{vT}, v0, 1, 2
    """)
    for r in range(4):
        a(f"v_cmp_eq_u32 vcc, {r}, v{vT}\ns_nop 1\nv_cndmask_b32 v{vMASK+r}, 0, v{vA}, vcc")
    if stamp:
        a(f"s_waitcnt vmcnt({8*NB-4})")
    st(2)

    steady = 8 * NB - 4

    def tile(b, left=0):
        waitK, waitV = (8 * left - 4, 8 * left - 8) if left else (steady, steady)
        if not left:
            a(f"""
            s_sub_u32 s{sREM}, s{sREM}, 1
            s_cbranch_scc0 L_nb{b}_{L}
            s_call_b64 s[{sRET}:{sRET+1}], L_bound_{L}
            """)
            if drain:
                a(f"s_cmp_eq_u32 s{sSTATE}, 2\ns_cbranch_scc1 L_drain{b}_{L}")
            a(f"""
L_nb{b}_{L}:
            s_cmp_lg_u32 s{sREM}, s{sASK}
            s_cbranch_scc1 L_na{b}_{L}
            s_call_b64 s[{sRET}:{sRET+1}], L_ask_{L}
L_na{b}_{L}:
            """)
            unit_to_off()
            a(f"s_add_u32 s{sU}, s{sU}, s{sSTR}")
            addrK()
        a(f"s_waitcnt vmcnt({waitK})")
        if not compute:
            if not left:
                issueK(b)
                addrV()
            a(f"s_waitcnt vmcnt({waitV})")
            if not left:
                issueV(b)
            return
        for i in range(4):
            c = "0" if i == 0 else q4(vS)
            a(f"v_mfma_f32_16x16x32_bf16 {q4(vS)}, {ring(b,0,i)}, {q4(vQ,i)}, {c}")
        if not left:
            issueK(b)
        a(f"""
        s_nop {7 if left else 3}
        v_max3_f32 v{vT}, v{vS}, v{vS+1}, v{vS+2}
        v_max_f32 v{vT}, v{vT}, v{vS+3}
        v_mov_b32 v{vT2}, v{vT}
        s_nop 1
        v_permlane16_swap_b32 v{vT}, v{vT2}
        v_max_f32 v{vT}, v{vT}, v{vT2}
        v_mov_b32 v{vT2}, v{vT}
        s_nop 1
        v_permlane32_swap_b32 v{vT}, v{vT2}
        v_max_f32 v{vT}, v{vT}, v{vT2}
        v_mul_f32 v{vT}, s{sC}, v{vT}
        v_max_f32 v{vN}, v{vM}, v{vT}
        v_sub_f32 v{vA}, v{vM}, v{vN}
        v_exp_f32 v{vA}, v{vA}
        v_mov_b32 v{vM}, v{vN}
        """)
        for r in range(4):
            a(f"v_fma_f32 v{vS+r}, v{vS+r}, s{sC}, -v{vN}")
        for r in range(4):
            a(f"v_exp_f32 v{vS+r}, v{vS+r}")
        for r in range(4):
            a(f"v_mul_f32 v{vO+r}, v{vO+r}, v{vA}")
        a(f"v_fma_f32 v{vL}, v{vL}, v{vA}, v{vS}")
        for r in range(1, 4):
            a(f"v_add_f32 v{vL}, v{vL}, v{vS+r}")
        for r in range(4):
            a(f"v_cvt_pk_bf16_f32 v{vS+r}, v{vS+r}, v{vS+r}")
        for r in range(4):
            for j in range(4):
                a(f"v_and_b32 v{vB+4*r+j}, v{vMASK+j}, v{vS+r}")
        if not left:
            addrV()
        a(f"s_waitcnt vmcnt({waitV})\ns_nop 0")
        for r in range(4):
            a(f"v_mfma_f32_16x16x32_bf16 {q4(vO)}, {ring(b,1,r)}, {q4(vB,r)}, {q4(vO)}")
        if not left:
            issueV(b)

    a(f"L_loop_{L}:")
    if sbar:
        a(f"s_cmp_ge_u32 s{sREM}, {TS - NB - LEAD - 8}\ns_cbranch_scc1 L_nsb_{L}\ns_barrier\nL_nsb_{L}:")
    for b in range(NB):
        tile(b)
    a(f"s_branch L_loop_{L}")
    if drain:
        for b0 in range(NB):
            a(f"L_drain{b0}_{L}:")
            for k in range(NB):
                tile((b0 + k) % NB, NB - k)
            a(f"s_nop 1\ns_branch L_done_{L}")

    a(f"""
L_ask_{L}:
    s_cmp_lg_u32 s{sSTATE}, 0
    s_cbranch_scc1 L_ask1_{L}
    s_load_dword s{sFLAG}, s[{sDBG}:{sDBG+1}], 0
    s_setpc_b64 s[{sRET}:{sRET+1}]
L_ask1_{L}:
    s_waitcnt lgkmcnt(0)
    s_cmp_lg_u32 s{sFLAG}, 0
    s_cbranch_scc1 L_ask2_{L}
    s_atomic_add s{sFLAG}, s[{sDBG}:{sDBG+1}], 0 glc
    s_branch L_ask1_{L}
L_ask2_{L}:
    """)
    if NT:
        a(f"s_mov_b32 s{sTK}, 1\ns_atomic_add s{sTK}, s[{sCTR}:{sCTR+1}], 0 glc")
    a(f"s_setpc_b64 s[{sRET}:{sRET+1}]")
    a(f"""
L_bound_{L}:
    s_cmp_eq_u32 s{sSTATE}, 1
    s_cbranch_scc1 L_bound1_{L}
    s_cmp_eq_u32 s{sSTATE}, 2
    s_cbranch_scc1 L_done_{L}
    s_mov_b32 s{sSTATE}, 1
    s_mov_b32 s{sREM}, {LEAD-1}
    s_setpc_b64 s[{sRET}:{sRET+1}]
L_bound1_{L}:
    """)
    if NT:
        a(f"""
        s_xor_b32 s{sPAR}, s{sPAR}, 4
        v_mov_b32 v{vT}, s{sPAR}
        s_cmp_lg_u32 s{sWAVE}, 0
        s_cbranch_scc1 L_bound2_{L}
        s_waitcnt lgkmcnt(0)
        v_mov_b32 v{vT2}, s{sTK}
        ds_write_b32 v{vT}, v{vT2} offset:{TKL}
        s_waitcnt lgkmcnt(0)
L_bound2_{L}:
        s_barrier
        ds_read_b32 v{vT2}, v{vT} offset:{TKL}
        s_waitcnt lgkmcnt(0)
        v_readfirstlane_b32 s{sTK}, v{vT2}
        s_mov_b32 s{sSTR}, 1
        s_cmp_ge_u32 s{sTK}, {NT - 2*N3 - N2}
        s_cbranch_scc1 L_bound3_{L}
        s_min_u32 s{sTMP}, s{sTK}, {N3 + N2}
        s_cselect_b32 s{sREM}, 1, 0
        s_add_u32 s{sU}, s{sTK}, s{sTMP}
        s_min_u32 s{sTMP}, s{sTK}, {N3}
        s_addc_u32 s{sREM}, s{sREM}, 0
        s_add_u32 s{sU}, s{sU}, s{sTMP}
        s_add_u32 s{sU}, s{sU}, {8*TS}
        s_setpc_b64 s[{sRET}:{sRET+1}]
L_bound3_{L}:
        """)
    a(f"""
    s_mov_b32 s{sSTATE}, 2
    s_mov_b32 s{sASK}, -1
    s_mov_b32 s{sREM}, {NB-1}
    s_mov_b32 s{sKD+2}, 0
    s_mov_b32 s{sVD+2}, 0
    s_setpc_b64 s[{sRET}:{sRET+1}]
    """)

    a(f"""
L_help_{L}:
    v_and_b32 v0, 63, v0
    v_mov_b32 v{vM}, 0xff800000
    v_mov_b32 v{vL}, 0
    v_mov_b32 v{vO}, 0
    v_mov_b32 v{vO+1}, 0
    v_mov_b32 v{vO+2}, 0
    v_mov_b32 v{vO+3}, 0
    s_mov_b32 s{sC}, {f32(c_scale)}
    """)
    if pf:
        a(f"""
        s_getpc_b64 s[{sPC}:{sPC+1}]
L_pc_{L}:
        s_sub_u32 s{sPC}, s{sPC}, L_pc_{L}-{L}
        s_subb_u32 s{sPC+1}, s{sPC+1}, 0
        v_lshlrev_b32 v{vPF}, 7, v0
        v_min_u32 v{vPF}, L_end_{L}-{L}, v{vPF}
        global_load_dword v{vZ}, v{vPF}, s[{sPC}:{sPC+1}]
        """)
    a(f"""
    s_waitcnt lgkmcnt(0)
    s_cmp_lg_u32 s2, 0
    s_cbranch_scc1 L_noinit_{L}
    v_and_b32 v{vT}, 31, v0
    v_mul_u32_u24 v{vT}, {cstr}, v{vT}
    v_add_u32 v{vT}, {WS_CTR}, v{vT}
    global_store_dwordx2 v{vT}, v[{vO}:{vO+1}], s[{sWS}:{sWS+1}] sc1
    v_mov_b32 v{vN}, 1
    s_waitcnt vmcnt(0)
    global_store_dword v{vO}, v{vN}, s[{sDBG}:{sDBG+1}] sc1
L_noinit_{L}:
    s_cmp_lg_u32 s{sU}, 0
    s_cbranch_scc1 L_done_{L}
    s_lshl_b32 s{sTMP}, s{sPAIR}, 8
    s_lshr_b32 s{sTM2}, s{sPAIR}, 4
    s_lshl_b32 s{sTM2}, s{sTM2}, 1
    v_lshl_add_u32 v{vT}, v{vT2}, 4, s{sTMP}
    v_and_b32 v{vM}, 7, v0
    v_lshl_add_u32 v{vM}, v{vM}, 1, s{sTMP}
    v_lshl_add_u32 v{vM}, v{vT2}, 6, v{vM}
    v_mov_b32 v{vL}, s{sTM2}
    """)
    for i in range(4):
        a(f"global_load_dwordx4 {q4(vQ, i)}, v{vA}, s[{sQ}:{sQ+1}] offset:{64*i}")
    for i in range(4):
        a(f"global_load_dwordx4 {q4(vB, i)}, v{vT}, s[{sKT}:{sKT+1}] offset:{64*i}")
    for r in range(4):
        a(f"global_load_ushort v{vO+r}, v{vM}, s[{sVT}:{sVT+1}] offset:{16*r}")
    a(f"""
    global_load_ushort v{vN}, v{vL}, s[{sMK}:{sMK+1}]
    s_waitcnt vmcnt(0)
    v_mfma_f32_16x16x32_bf16 {q4(vS)}, {q4(vB,0)}, {q4(vQ,0)}, 0
    v_mfma_f32_16x16x32_bf16 {q4(vS)}, {q4(vB,1)}, {q4(vQ,1)}, {q4(vS)}
    v_mfma_f32_16x16x32_bf16 {q4(vS)}, {q4(vB,2)}, {q4(vQ,2)}, {q4(vS)}
    v_mfma_f32_16x16x32_bf16 {q4(vS)}, {q4(vB,3)}, {q4(vQ,3)}, {q4(vS)}
    v_lshlrev_b32 v{vO}, 16, v{vO}
    v_lshlrev_b32 v{vO+1}, 16, v{vO+1}
    v_lshlrev_b32 v{vO+2}, 16, v{vO+2}
    v_lshlrev_b32 v{vO+3}, 16, v{vO+3}
    v_lshlrev_b32 v{vN}, 16, v{vN}
    v_sub_f32 v{vN}, 1.0, v{vN}
    v_mul_f32 v{vN}, {f32(-1e9*math.log2(math.e))}, v{vN}
    v_cmp_gt_u32 vcc, 16, v0
    s_nop 1
    v_cndmask_b32 v{vL}, 0, 1.0, vcc
    v_fma_f32 v{vM}, v{vS}, s{sC}, v{vN}
L_done_{L}:
    """)
    st(3)
    a(f"""
    s_mul_i32 s{sTMP}, s{sWAVE}, 1536
    v_lshlrev_b32 v{vKO}, 4, v0
    v_lshlrev_b32 v{vVO}, 3, v0
    v_add_u32 v{vT}, s{sTMP}, v{vKO}
    v_add_u32 v{vT2}, s{sTMP}, v{vVO}
    ds_write_b128 v{vT}, {q4(vO)}
    ds_write_b64 v{vT2}, v[{vM}:{vL}] offset:1024
    s_cmp_eq_u32 s{sWAVE}, {NW}
    s_cselect_b64 exec, 1, -1
    s_waitcnt lgkmcnt(0)
    s_cbranch_scc1 {f"L_dry1_{L}" if warm else f"L_end_{L}"}
    s_barrier
    s_cmp_lg_u32 s{sWAVE}, 0
    s_cbranch_scc1 L_end_{L}
L_dry1_{L}:
    """)

    def merge(n):
        ML = CB + 4 * n
        a(f"v_max3_f32 v{vM}, v{ML}, v{ML+2}, v{ML+4}")
        i = 3
        while i < n:
            if i + 1 < n:
                a(f"v_max3_f32 v{vM}, v{vM}, v{ML+2*i}, v{ML+2*i+2}")
                i += 2
            else:
                a(f"v_max_f32 v{vM}, v{vM}, v{ML+2*i}")
                i += 1
        for i in range(n):
            a(f"v_sub_f32 v{ML+2*i}, v{ML+2*i}, v{vM}")
        for i in range(n):
            a(f"v_exp_f32 v{ML+2*i}, v{ML+2*i}")
        a("s_waitcnt vmcnt(0) lgkmcnt(0)" if n == S else "s_waitcnt lgkmcnt(0)")
        a(f"v_mul_f32 v{vL}, v{ML}, v{ML+1}")
        for r in range(4):
            a(f"v_mul_f32 v{vO+r}, v{ML}, v{CB+r}")
        for i in range(1, n):
            a(f"v_fmac_f32 v{vL}, v{ML+2*i}, v{ML+2*i+1}")
            for r in range(4):
                a(f"v_fmac_f32 v{vO+r}, v{ML+2*i}, v{CB+4*i+r}")

    for i in range(NP):
        a(f"ds_read_b64 v[{CB+4*NP+2*i}:{CB+4*NP+2*i+1}], v{vVO} offset:{1536*i+1024}")
    for i in range(NP):
        a(f"ds_read_b128 {q4(CB,i)}, v{vKO} offset:{1536*i}")
    a(f"""
    s_lshl_b32 s{sTMP}, s2, 11
    v_add_u32 v{vT}, s{sTMP}, v{vKO}
    v_add_u32 v{vT2}, s{sTMP}, v{vVO}
    s_lshl_b32 s{sTMP}, s{sPAIR}, 14
    v_add_u32 v{vKO}, s{sTMP}, v{vKO}
    v_add_u32 v{vVO}, s{sTMP}, v{vVO}
    s_mov_b32 s{sTK}, 1
    s_waitcnt lgkmcnt({0 if stamp else NP})
    """)
    merge(NP)
    if warm:
        a(f"s_cmp_eq_u32 s{sWAVE}, {NW}\ns_cbranch_scc1 L_last_{L}")
    a(f"""
    global_store_dwordx4 v{vT}, {q4(vO)}, s[{sWS}:{sWS+1}] sc1
    global_store_dwordx2 v{vT2}, v[{vM}:{vL}], s[{sWS}:{sWS+1}] offset:1024 sc1
    """)
    st(4)
    a(f"""
    s_waitcnt vmcnt(0)
    s_atomic_add s{sTK}, s[{sCTR}:{sCTR+1}], 4 glc
    s_waitcnt lgkmcnt(0)
    """)
    st(5)

    def dump():
        if not stamp:
            return
        if diag:
            a(f"s_branch L_diag_{L}")
            return
        a(f"""
        s_getreg_b32 s{sTMP}, hwreg(HW_REG_XCC_ID)
        s_waitcnt lgkmcnt(0)
        v_mov_b32 v{vS}, s{sT}
        v_mov_b32 v{vS+1}, s{sT+12}
        v_mov_b32 v{vS+2}, s{sTMP}
        v_mov_b32 v{vS+3}, s{sTK}
L_hold{dump.n}_{L}:
        s_memrealtime s[{sPC}:{sPC+1}]
        s_waitcnt lgkmcnt(0)
        s_sub_u32 s{sPC}, s{sPC}, s{sT}
        s_cmp_lt_u32 s{sPC}, 9000
        s_cbranch_scc1 L_hold{dump.n}_{L}
        s_lshl_b32 s{sTMP}, s2, 4
        s_add_u32 s{sTMP}, s{sTMP}, {WS_STAMP}
        v_mov_b32 v{vT}, s{sTMP}
        s_mov_b64 exec, 1
        global_store_dwordx4 v{vT}, {q4(vS)}, s[{sWS}:{sWS+1}]
        s_lshl_b32 s{sTMP}, s2, 5
        s_add_u32 s{sTMP}, s{sTMP}, {WS_STAMP + 0x1000}
        v_mov_b32 v{vT}, s{sTMP}
        """)
        dump.n += 1
        for i in range(7):
            a(f"v_mov_b32 v{vT2}, s{sT+2*i}\nglobal_store_dword v{vT}, v{vT2}, s[{sWS}:{sWS+1}] offset:{4*i}")

    dump.n = 0
    if stamp:
        a(f"s_cmp_lg_u32 s{sTK}, {S-1}\ns_cbranch_scc1 L_notlast_{L}")
    else:
        a(f"s_cmp_lg_u32 s{sTK}, {S-1}\ns_cbranch_scc1 L_end_{L}")
    a(f"""
L_last_{L}:
    v_add_u32 v{vT}, 0x1000, v{vVO}
    v_add_u32 v{vT2}, 0x3000, v{vVO}
    v_add_u32 v{vA}, 0x1000, v{vKO}
    v_add_u32 v{vN}, 0x3000, v{vKO}
    """)
    for i in range(S):
        reg, o = (vT, 2048 * i - 4096) if i < 4 else (vT2, 2048 * i - 12288)
        a(f"global_load_dwordx2 v[{CB+4*S+2*i}:{CB+4*S+2*i+1}], v{reg}, s[{sWS}:{sWS+1}] offset:{o+1024} sc1")
    for i in range(S):
        reg, o = (vA, 2048 * i - 4096) if i < 4 else (vN, 2048 * i - 12288)
        a(f"global_load_dwordx4 {q4(CB,i)}, v{reg}, s[{sWS}:{sWS+1}] offset:{o} sc1")
    a(f"""
    v_bfe_u32 v{vT}, v0, 3, 1
    v_lshl_add_u32 v{vA}, v{vT}, 8, s{sP9}
    v_lshrrev_b32 v{vT}, 4, v0
    v_lshl_add_u32 v{vA}, v{vT}, 6, v{vA}
    v_and_b32 v{vT}, 7, v0
    v_lshl_add_u32 v{vA}, v{vT}, 1, v{vA}
    s_waitcnt vmcnt({S})
    """)
    merge(S)
    a(f"""
    v_mov_b32 v{vT2}, v{vL}
    s_nop 1
    v_permlane16_swap_b32 v{vL}, v{vT2}
    v_add_f32 v{vL}, v{vL}, v{vT2}
    v_mov_b32 v{vT2}, v{vL}
    s_nop 1
    v_permlane32_swap_b32 v{vL}, v{vT2}
    v_add_f32 v{vL}, v{vL}, v{vT2}
    v_rcp_f32 v{vL}, v{vL}
    s_cmp_eq_u32 s{sWAVE}, {NW}
    v_mul_f32 v{vO}, v{vO}, v{vL}
    v_mul_f32 v{vO+1}, v{vO+1}, v{vL}
    v_mul_f32 v{vO+2}, v{vO+2}, v{vL}
    v_mul_f32 v{vO+3}, v{vO+3}, v{vL}
    v_cvt_pk_bf16_f32 v{vO}, v{vO}, v{vO+1}
    v_cvt_pk_bf16_f32 v{vO+2}, v{vO+2}, v{vO+3}
    s_cbranch_scc1 L_end_{L}
    global_store_short v{vA}, v{vO}, s[{sOUT}:{sOUT+1}]
    global_store_short_d16_hi v{vA}, v{vO}, s[{sOUT}:{sOUT+1}] offset:16
    global_store_short v{vA}, v{vO+2}, s[{sOUT}:{sOUT+1}] offset:32
    global_store_short_d16_hi v{vA}, v{vO+2}, s[{sOUT}:{sOUT+1}] offset:48
    """)
    if stamp:
        a(f"L_notlast_{L}:")
        st(6)
        dump()
    if diag:
        a(f"L_diag_{L}:")
        diag_tail(a, L, sDBG, sT, sT + 2 * int(diag[-1]), 66, diag[:-1])
    a(f"L_end_{L}:\ns_endpgm")
    lds = TKL + 16
    return dict(label=label, body=a.text(), grid=NWG, block=64 * NP, lds=lds, nvgpr=nv, acc=(nv + 3) // 4 * 4,
                nsgpr=102 if table else 76 if stamp else 52)


if __name__ == "__main__":
    k = gen(NAME + "_kernel")
    sys.stdout.write(final_file(k))
```

```python
import math
import sys

from diag import diag_tail
from gen1 import Asm, NAME, bench_file, f32, final_file, kernel_text, meta
from gen4 import NAMES, parse_map

WS_CTR = 0x100000
WS_PRG = 0x110000
WS_STAMP = 0x1000000

MAPS = {
    "a1": "A=9^11^12^13^19 B=8^10^11^15^17^18^22 C=8^9^10^12^14^15^22 D=9^11 E=12^17^22 F=10^12^14^15^19^22 "
          "G=9^11^14^15 H=8^9^10^12^14^16^19 w0=10^12^17^20 w1=10^14^19 b=11 t0=9^16 t1=8^22 t2=9^13^21 "
          "t3=8^9^12^13^14^19^21 t4=10^12^14^19^22 r0=8^15 r1=11^13^18^21 r2=12 r3=9^10^17^18",
    "a2": "A=8^14^19 B=8^9^14^16^17^18^19^21^22 C=10^14 D=9^10^11^12^14^15^19^20 E=9^10^13^21 F=9^11 "
          "G=8^12^13^14^15^16^17^20^21 H=9^12^15 w0=9^12^13^14^15^19 w1=8^10^11^14^19 b=8^11 t0=8^9^15^16^21 "
          "t1=10^11^12^22 t2=15^16 t3=9^10^14^15^16^18^19^21^22 t4=8^9^12^13^20 r0=8^15 r1=9^16 r2=12^14^19 "
          "r3=8^10^11^14^15^19",
    "b1": "A=8^9^11^12^13^19^22 B=10^12^14^19^22 C=8^9^10^12^14^15^22 D=9^11^12 E=12^17^22 F=10^12^14^15^19^22 "
          "G=9^10^11^12^15^19^22 H=8^9^10^12^14^16^19 w0=10^12^17^20 w1=10^14^19 b=8^9^12^13^14^19^21 t0=9^16 "
          "t1=8^22 t2=9^13^21 t3=11 t4=8^10^11^15^17^18^22 r0=8^15 r1=9^11^18 r2=12 r3=9^10^17^18",
    "b2": "A=13^14 B=22 C=14 D=11^16^22 F=11^22 G=14 w0=11^14^18^19 w1=11^16^22 b=12 t0=13^21 t1=16^22 t2=14^19 "
          "t3=13^20^21 t4=11^17 r0=8 r1=9 r2=10 r3=15",
    "b3": "A=8^9^10^12^13^14 B=8^10^17 C=8^10^12^14 D=9^11 E=10 F=11 G=10^11^14^18 w0=14^19^22 w1=8^14^15^19^22 "
          "b=8 t0=12^22 t1=11^18 t2=8^10^14^19 t3=20 t4=9^18^21 r0=8^12^13 r1=13 r2=9^16 r3=18",
    "b4": "A=9^13^16^21 B=8^10^17 C=10^14 D=9^10 E=8^10 F=8^10^11^12^17^20 G=10^14 w0=13^20 w1=8^15^20 b=8 "
          "t0=8^10^13^16^21^22 t1=8^12^20 t2=10^14^19 t3=8^11^12^18^20 t4=8^13^22 r0=8^11^12^20 r1=9^16 r2=13 "
          "r3=8^10^22",
    "c1": "A=10^11^13^14^15^19 B=8^9^10^12^13^14^15^19^21^22 C=8^9^10^12^14^15^22 D=11^16 E=12^17^22 "
          "F=10^12^14^15^19^22 G=9^10^11^12^15^19^22 H=8^9^12^16 w0=10^12^17^20 w1=9^16 b=11 t0=10^14^19 t1=8^22 "
          "t2=8^9^13^15^21 t3=8^9^12^13^14^19^21 t4=8^10^11^15^17^18^22 r0=8^15 r1=9^10^11^12^17^18^20 r2=12 "
          "r3=9^10^17^18",
    "d1": "A=10^11^13^14^15^19 B=9^10^12^13^14^15^19^21 C=8^9^10^12^14^15^22 D=11^16 E=12^17^22 "
          "F=8^9^10^12^13^14^19^21^22 G=9^10^11^12^15^19^22 H=8^9^12^16 w0=10^12^17^20 w1=9^16 b=11 t0=10^14^19 "
          "t1=15^22 t2=8^9^13^15^21 t3=8^9^12^13^14^19^21 t4=8^10^11^15^17^18^22 r0=8^15 r1=9^10^11^12^17^18^20 "
          "r2=12 r3=9^10^17^18",
    "d2": "A=8^9^12^13^20 B=8^9^10^13^14^19^21^22 C=19 D=10^11^13^17^21^22 E=8^10^13^21^22 F=8^11^22 "
          "G=8^9^10^14^22 H=8^9^13^21^22 w0=8 w1=8^11^13^16^21 b=9^22 t0=9^10^11^13^17^21 t1=10^13^16^21 "
          "t2=10^14^19 t3=9^11^13^18^20^21 t4=8^9^12^13^20^21 r0=10^11^17 r1=8^12^13^16^21 r2=8^9^10^13^21^22 r3=8^15",
    "c3": "A=9^13^16^21 B=8^10^17 C=10^14 D=9^10 E=8^10 F=8^10^11^12^17^20 G=10^14 w0=8^10^22 w1=13^20 b=8 "
          "t0=8^10^13^16^21^22 t1=11 t2=10^14^19 t3=8^11^12^18^20 t4=11^12^13^18^20^22 r0=8^11^12^20 r1=13 r2=9^16 "
          "r3=8^15^20",
    "e1": "A=21 B=11^12^13^21 C=9^10^11^14 D=9 E=9^10^11^18 F=9^11^16 G=10^14 H=9^15^16^20 w0=9^12^15^16^20 "
          "w1=13^18^21 b=8^12^20 t0=9^13^21 t1=8^22 t2=8^9^13^21 t3=8^10^12^14^19^20 t4=10^17 r0=9^11^18 r1=11^13^21 "
          "r2=8^9^10^12^13^15^20^21 r3=9^16",
    "e2": "A=13^16 B=8^10^11^12^14^19 C=10^14 D=8^9^12^20 E=10 F=11 G=10^14^18 H=8^11^12 w0=9^13^21 w1=11 "
          "b=10^14^19 t0=8^15 t1=8^10^14^19^22 t2=8^12^20 t3=18 t4=10^17 r0=10 r1=8^9^16^21 r2=9^12^14^19^20^22 r3=9^16",
    "e3": "A=9^13 B=8^13^21 C=10^14 D=9 E=10^12 F=11 G=10^14 H=8^9^12 w0=8 w1=9^16 b=8^12^20 t0=9^13^21 "
          "t1=9^10^14^16^19 t2=11^18 t3=10^17 t4=8^22 r0=11 r1=12 r2=8^11^15 r3=10",
    "f1": "A=9^13 B=8^13^21 C=14 D=9 G=14 H=8^9 w0=8 w1=9^16 b=8^20 t0=9^13^21 t1=9^14^16^19 t2=18 t3=17 t4=8^22 "
          "r0=11 r1=12 r2=15 r3=10",
    "f2": "A=9^13 B=8^13^21 C=14 D=9 G=14 H=8^9 w0=8 w1=9^16 b=8^20 t0=9^13^21 t1=9^14^16^19 t2=18 t3=17 t4=8^22 "
          "r0=10 r1=11 r2=12 r3=15",
    "f3": "A=9^13 B=13^21 C=14 D=9 G=14 H=9 w0=8 w1=9^16 b=20 t0=9^13^21 t1=14^19 t2=18 t3=17 t4=22 "
          "r0=10 r1=11 r2=12 r3=15",
    "f4": "A=9^13 B=9 C=14 D=9 G=14 H=9 w0=8 w1=9^16 b=20 t0=9^13^21 t1=14^19 t2=18 t3=17 t4=22 "
          "r0=10 r1=11 r2=12 r3=15",
    "f5": "A=9^13 B=13^21 C=14 G=14 w0=8 w1=9^16 b=20 t0=9^13^21 t1=14^19 t2=18 t3=17 t4=22 "
          "r0=10 r1=11 r2=12 r3=15",
    "f6": "A=9^13 B=13^21 C=14 D=9 G=14 H=9 w0=15 w1=9^16 b=20 t0=9^13^21 t1=14^19 t2=18 t3=17 t4=22 "
          "r0=8 r1=10 r2=11 r3=12",
    "f7": "A=9^13 B=13^21 C=14 D=9 G=14 H=9 w0=12 w1=9^16 b=20 t0=9^13^21 t1=14^19 t2=18 t3=17 t4=22 "
          "r0=8 r1=10 r2=11 r3=15",
    "g1": "A=9^10^13^14 B=8^13^21 C=10^14 D=9 E=10^12 F=11 G=10^14 H=8^9^12 w0=8 w1=9^16 b=8^12^20 t0=9^13^21 "
          "t1=9^10^14^16^19 t2=11^18 t3=10^17 t4=8^22 r0=10 r1=12 r2=8^11^15 r3=11",
    "g2": "A=9^13^14^18 B=13^21 C=14^15 D=9 G=14 H=9^22 w0=11^12^14^19 w1=9^16 b=22 t0=9^13^21 t1=11^14^19 "
          "t2=9^16^18 t3=8^17 t4=9^13^20^21 r0=11 r1=8^9^10^16 r2=8 r3=15",
    "h1": "A=9^13 B=11^13^15^21 C=10^14 D=9^10^17 E=10^12 F=11 G=10^14 H=8^9^12 w0=9^16 w1=8 b=8^12^20 t0=9^13^21 "
          "t1=9^10^14^16^19 t2=8^22 t3=11^17 t4=11^18 r0=11 r1=12 r2=8^11^15 r3=10^11",
    "j1": "A=9^12^13 B=8^13^21 C=10^14 D=13^21 E=10^12 F=11 G=10^14 H=8^9^12 w0=8 w1=9^16 b=9^10^14^16^19 t0=9^13^21 "
          "t1=8^22 t2=11^18 t3=10^17 t4=8^20 r0=11 r1=12 r2=8^11^15 r3=9^13^14",
    "j2": "A=10^13^14^16^19 B=8^13^21 C=10^14 D=9 E=10^12 F=11 G=10^14 H=8^9^12 w0=8^10^17 w1=9^16 b=8^22 t0=9^13^21 "
          "t1=9^10^14^16^19 t2=10^17 t3=8^11^15^18 t4=8^12^20 r0=8^15 r1=12 r2=10^11^14 r3=9^10^13",
    "j3": "A=9^13 B=8^13^21 C=10^14 D=9 E=10^12 F=11 G=10^14 H=8^9^12 w0=12^20 w1=11 b=8^12^20 t0=8^9^11^13^15^21 "
          "t1=8^22 t2=9^10^14^16^19 t3=10^17 t4=11^18 r0=9^16 r1=12 r2=8^11^15 r3=9^10^13",
    "l1": "A=9^12^13 B=8^13^21 C=10^14 D=13^21 E=10^12 F=11^12 G=10^14 H=8^9^12 w0=8 w1=9^16 b=10^13^16^19 "
          "t0=9^13^21 t1=8^9^10^14^16^19^22 t2=8^20 t3=10^17 t4=11^18 r0=9^13^14 r1=12 r2=8^11^12^15 r3=11",
    "p1": "A=13 B=22 C=14 G=14 w0=16 w1=15 b=12 t0=17 t1=18 t2=14^19 t3=20 t4=13^21",
    "p2": "A=12 B=22 C=14 G=14 H=12 w0=16 w1=15 b=13 t0=17 t1=18 t2=14^19 t3=12^20 t4=21",
}


def gen(label, NB=4, amap="a1", flags="nt", stamp=0, sbar=2, diag="", cstr=256, table=0, mid=0, prio=1, trace=0, wv=-1, fine=0, tlb=0, thr=-1, ctl=0, PG=32, NL=16, lag=0, rd=1, pxor=2, pfl="", r0=4, zone=0, skew=0, sx=2, sy=2, sy1=0, sy3=0, oflags="", clr=0):
    NW, S, T = 4, 8, 64
    NP = NW + 1
    NWG = 32 * S
    if diag:
        stamp = 1
    assert T % NB == 0 and NB % 2 == 0
    W = parse_map(MAPS.get(amap, amap))
    TB = ["b", "t0", "t1", "t2", "t3", "t4"]
    sW = 76
    rows = [W["r%d" % j] for j in range(4)]
    plain = all(v & (v - 1) == 0 for v in rows) and all(W[n] & sum(rows) == 0 for n in NAMES[:16])
    gx = table or not (plain and W["r0"] + W["r1"] < 4096)

    def wt(n):
        if table:
            i = NAMES.index(n)
            return f"s{sW + i + (1 if i >= 16 else 0)}"
        return f"{W[n]:#x}"

    c_scale = (128 ** -0.5) * math.log2(math.e)

    vLA = 1
    vZ, vZ2 = 2, 3
    vO = 4
    vM, vL = 8, 9
    vT, vT2, vA, vN = 10, 11, 12, 13
    vKO, vVO = 14, 15
    CB = 16
    vS = 16
    vQ = 24
    vMASK = 28
    vB = 32
    vLN = 48
    vLV = 52
    vAD = 56
    RING0 = 64
    assert CB + NP * 6 <= RING0 and CB + S * 6 <= RING0
    nv = RING0 + 16 * NB

    def ring(b, i):
        o = RING0 + 16 * b + 4 * i
        return "v[%d:%d]" % (o, o + 3)

    def q4(base, i=0):
        return "v[%d:%d]" % (base + 4 * i, base + 4 * i + 3)

    sQ, sK, sV, sKT, sVT, sMK, sOUT, sDBG, sWS = 4, 6, 8, 10, 12, 14, 16, 18, 20
    sEX = 22
    sD = 24
    sPAIR, sSPL, sWAVE, sOFF, sC, sIT, sTMP, sP9 = 32, 33, 34, 35, 36, 37, 38, 39
    sTI, sTK, sFLAG, sTM2, sWB = 40, 42, 44, 45, 47
    sTHR = 46
    sSK = 31
    sCTL, sJ, sPV, sPUB, sMINE, sPART, sEN = 41, 43, 28, 29, 30, 74, 3
    PRD = 192 if table else 128
    sPC = 48
    sCTR = 50
    sT = 52
    L = label
    SCL = NP * 1536
    a = Asm()

    def st(i):
        if stamp:
            a(f"s_memrealtime s[{sT+2*i}:{sT+2*i+1}]")

    def xor_bits(dst, init, src, names):
        cur = init
        for j, n in enumerate(names):
            if not table and W[n] == 0:
                continue
            a(f"s_bitcmp1_b32 s{src}, {j}")
            if cur is None:
                a(f"s_cselect_b32 s{dst}, {wt(n)}, 0")
            else:
                a(f"s_cselect_b32 s{sTMP}, {wt(n)}, 0\ns_xor_b32 s{dst}, s{cur}, s{sTMP}")
            cur = dst

    lgNB = NB.bit_length() - 1

    def group_off():
        xor_bits(sOFF, sWB, sTI, TB[lgNB:])
        if table:
            a(f"s_and_b32 s{sOFF}, s{sOFF}, 0x7fff00")
        a(f"s_add_u32 s{sTI}, s{sTI}, 1")

    def addr(b):
        for j in range(lgNB):
            if b and (b ^ (b - 1)) >> j & 1:
                a(f"s_xor_b32 s{sOFF}, s{sOFF}, {wt(TB[j])}")
                if skew >= 2 and j == 0:
                    a(f"s_xor_b32 s{sOFF}, s{sOFF}, s{sSK}")
        if gx:
            for i in range(4):
                a(f"v_xor_b32 v{vAD + 4*(b & 1) + i}, s{sOFF}, v{vLN + i}")

    def issue(b, paced=True):
        if paced and wv >= 0:
            a(f"s_waitcnt vmcnt({wv})")
        if paced and thr >= 0:
            issue.n += 1
            a(f"s_cmp_eq_u32 s{sTHR}, 0\ns_cbranch_scc1 L_nt{issue.n}_{L}\ns_waitcnt vmcnt({thr})\nL_nt{issue.n}_{L}:")
        for i in range(4):
            if paced and fine:
                a(f"s_waitcnt vmcnt({fine - 1})")
            if gx:
                a(f"buffer_load_dwordx4 {ring(b,i)}, v{vAD + 4*(b & 1) + i}, s[{sD}:{sD+3}], 0 offen {flags}")
            else:
                o = (i & 1) * W["r0"] + (i >> 1) * W["r1"]
                a(f"buffer_load_dwordx4 {ring(b,i)}, v{vLN}, s[{sD}:{sD+3}], s{sOFF} offen offset:{o} {flags}")

    issue.n = 0

    def lane_rows(dst, bit):
        if not gx and W["r3"] == W["r2"] << 1:
            a(f"v_bfe_u32 v{vZ}, v0, {bit}, 2\nv_lshl_add_u32 v{dst}, v{vZ}, {W['r2'].bit_length() - 1}, v{dst}")
        else:
            for j in range(2):
                a(f"v_bfe_i32 v{vZ}, v0, {bit + j}, 1\nv_and_b32 v{vZ}, {wt('r%d' % (2 + j))}, v{vZ}\n"
                  f"v_xor_b32 v{dst}, v{dst}, v{vZ}")
        if gx:
            a(f"v_xor_b32 v{dst+1}, {wt('r0')}, v{dst}\nv_xor_b32 v{dst+2}, {wt('r1')}, v{dst}\n"
              f"v_xor_b32 v{dst+3}, {wt('r1')}, v{dst+1}")

    a(f"""
    s_cmp_ge_u32 s2, {NWG}
    s_cbranch_scc1 L_end_{L}
    s_load_dwordx16 s[4:19], s[0:1], 0
    s_load_dwordx2 s[20:21], s[0:1], 64
    """)
    st(0)
    a(f"""
    v_lshrrev_b32 v{vN}, 6, v0
    s_and_b32 s{sSPL}, s2, 7
    s_lshr_b32 s{sPAIR}, s2, 3
    v_readfirstlane_b32 s{sWAVE}, v{vN}
    v_bfe_u32 v{vT2}, v0, 4, 2
    s_lshl_b32 s{sP9}, s{sPAIR}, 9
    v_bfe_u32 v{vA}, v0, 3, 1
    v_lshl_add_u32 v{vA}, v{vA}, 8, s{sP9}
    s_cmp_eq_u32 s{sWAVE}, {NW}
    s_cbranch_scc1 L_help_{L}
    """)
    if table:
        a(f"""
        s_waitcnt lgkmcnt(0)
        s_load_dwordx16 s[{sW}:{sW+15}], s[{sDBG}:{sDBG+1}], 64
        s_load_dwordx8 s[{sW+16}:{sW+23}], s[{sDBG}:{sDBG+1}], 128
        s_waitcnt lgkmcnt(0)
        """)
    xor_bits(sWB, None, sWAVE, ["w0", "w1"])
    xor_bits(sWB, sWB, 2, list("ABCDEFGH"))
    def skw(mask, word):
        if table and skew == 3:
            return f"s{sW + word}"
        if table:
            return wt("B")
        v = 0
        for j, n in enumerate("ABC"):
            if mask >> j & 1:
                v ^= W[n]
        return f"{v:#x}"

    if skew:
        a(f"s_cmp_eq_u32 s{sWAVE}, 3\ns_cselect_b32 s{sTMP}, {skw(sx, 16)}, 0\ns_xor_b32 s{sWB}, s{sWB}, s{sTMP}")
    if skew >= 2:
        a(f"s_cmp_eq_u32 s{sWAVE}, 2\ns_cselect_b32 s{sSK}, {skw(sy, 21)}, 0")
        for wv_, mask, word in ((1, sy1, 22), (3, sy3, 23)):
            if (table and skew == 3) or mask:
                a(f"s_cmp_eq_u32 s{sWAVE}, {wv_}\ns_cselect_b32 s{sSK}, {skw(mask, word)}, s{sSK}")
    if table:
        a(f"s_and_b32 s{sWB}, s{sWB}, 0x7fff00")
    a(f"""
    v_and_b32 v{vT}, 3, v0
    v_lshlrev_b32 v{vT}, 4, v{vT}
    v_lshl_add_u32 v{vLN}, v{vT2}, 6, v{vT}
    v_add_u32 v{vA}, v{vA}, v{vLN}
    """)
    lane_rows(vLN, 2)
    a(f"""
    s_mov_b32 s{sOFF}, s{sWB}
    s_lshl_b32 s{sTMP}, s{sPAIR}, 23
    s_mov_b32 s{sD+2}, 0x800000
    s_mov_b32 s{sD+3}, 0x20000
    """)
    addr(0)
    a(f"""
    s_waitcnt lgkmcnt(0)
    s_add_u32 s{sD}, s{sK}, s{sTMP}
    s_addc_u32 s{sD+1}, s{sK+1}, 0
    """)
    st(1)
    a(f"global_load_dwordx4 {q4(vQ)}, v{vA}, s[{sQ}:{sQ+1}]")
    issue(0, False)
    a(f"s_add_u32 s{sV}, s{sV}, s{sTMP}\ns_addc_u32 s{sV+1}, s{sV+1}, 0")
    for b in range(1, NB):
        addr(b)
        issue(b, False)
    a(f"v_and_b32 v{vLV}, 15, v0\nv_lshlrev_b32 v{vLV}, 4, v{vLV}")
    lane_rows(vLV, 4)
    a(f"""
    s_mov_b32 s{sTI}, 1
    {"s_mov_b32 s%d, 0" % sTHR if ctl or zone else "s_and_b32 s%d, s2, 2" % sTHR}
    s_mov_b32 s{sC}, {f32(c_scale)}
    s_mov_b32 s{sEX}, 0x01010101
    s_mov_b32 s{sEX+1}, 0x01010101
    s_lshl_b32 s{sTMP}, s{sWAVE}, 13
    s_add_u32 s{sTMP}, s{sTMP}, {SCL}
    v_bfe_u32 v{vLA}, v0, 3, 1
    v_lshl_add_u32 v{vLA}, v{vLA}, 6, s{sTMP}
    v_lshl_add_u32 v{vLA}, v{vT2}, 4, v{vLA}
    v_and_b32 v0, 63, v0
    v_mov_b32 v{vM}, 0xff800000
    v_mov_b32 v{vL}, 0
    v_mov_b32 v{vO}, 0
    v_mov_b32 v{vO+1}, 0
    v_mov_b32 v{vO+2}, 0
    v_mov_b32 v{vO+3}, 0
    v_and_b32 v{vT}, 1, v0
    v_lshlrev_b32 v{vT}, 4, v{vT}
    v_mov_b32 v{vA}, 0xffff
    v_lshlrev_b32 v{vA}, v{vT}, v{vA}
    v_bfe_u32 v{vT}, v0, 1, 2
    """)
    for r in range(4):
        a(f"v_cmp_eq_u32 vcc, {r}, v{vT}\ns_nop 1\nv_cndmask_b32 v{vMASK+r}, 0, v{vA}, vcc")
    steady = 4 * (NB - 1)
    if stamp and not mid:
        a(f"s_waitcnt vmcnt({steady})")
        st(2)

    def ktile(b):
        addr(b)
        a(f"s_waitcnt vmcnt({steady})")
        for i in range(4):
            a(f"v_mfma_f32_16x16x32_bf16 {q4(vB,i)}, {ring(b,i)}, {q4(vQ)}, 0")
        issue(b)
        a("s_nop 0")
        sq = vS + 4 * (b & 1)
        for i in range(4):
            d = vB + 4 * i
            a(f"v_add_f32_dpp v{sq+i}, v{d+1}, v{d} quad_perm:[1,1,1,1] row_mask:0xf bank_mask:0xf")
            a(f"v_add_f32_dpp v{sq+i}, v{d+2}, v{sq+i} quad_perm:[2,2,2,2] row_mask:0xf bank_mask:0xf")
            a(f"v_add_f32_dpp v{sq+i}, v{d+3}, v{sq+i} quad_perm:[3,3,3,3] row_mask:0xf bank_mask:0xf")
        a(f"""
        v_max3_f32 v{vM}, v{vM}, v{sq}, v{sq+1}
        v_max3_f32 v{vM}, v{vM}, v{sq+2}, v{sq+3}
        s_mov_b64 exec, s[{sEX}:{sEX+1}]
        ds_write_b128 v{vLA}, {q4(sq)} offset:{128*b}
        s_mov_b64 exec, -1
        """)

    def vtile(b, left=0):
        sq = vS + 4 * (b & 1)
        nq = vS + 4 * ((b + 1) & 1)
        a("s_waitcnt lgkmcnt(0)")
        if left != 1:
            a(f"ds_read_b128 {q4(nq)}, v{vLA} offset:{128*(b+1)}")
        for r in range(4):
            a(f"v_fma_f32 v{sq+r}, v{sq+r}, s{sC}, -v{vM}")
        for r in range(4):
            a(f"v_exp_f32 v{sq+r}, v{sq+r}")
        if not left:
            addr(b)
        a("s_nop 0")
        for r in range(4):
            a(f"v_add_f32 v{vL}, v{vL}, v{sq+r}")
        for r in range(4):
            a(f"v_cvt_pk_bf16_f32 v{sq+r}, v{sq+r}, v{sq+r}")
        for r in range(4):
            for j in range(4):
                a(f"v_and_b32 v{vB+4*r+j}, v{vMASK+j}, v{sq+r}")
        a(f"s_waitcnt vmcnt({4*(left-1) if left else steady})\ns_nop 0")
        for r in range(4):
            a(f"v_mfma_f32_16x16x32_bf16 {q4(vO)}, {ring(b,r)}, {q4(vB,r)}, {q4(vO)}")
        if not left:
            issue(b)

    NR = T // NB
    if ctl:
        lgp = PG.bit_length() - 1
        a(f"""
        s_mov_b32 s{sCTL}, 0
        s_mov_b32 s{sJ}, 0
        s_mov_b32 s{sPV}, 0
        s_and_b32 s{sPUB}, s{sPAIR}, {PG-1}
        s_lshr_b32 s{sTMP}, s{sPAIR}, {lgp}
        s_lshl_b32 s{sTMP}, s{sTMP}, 3
        s_add_u32 s{sTMP}, s{sTMP}, s{sSPL}
        s_xor_b32 s{sTM2}, s{sTMP}, {pxor}
        s_lshl_b32 s{sEN}, s{sTM2}, 2
        s_add_u32 s{sEN}, s{sEN}, {PRD}
        s_mul_i32 s{sTMP}, s{sTMP}, {NL*128}
        s_mul_i32 s{sTM2}, s{sTM2}, {NL*128}
        s_add_u32 s{sTMP}, s{sTMP}, {WS_PRG}
        s_add_u32 s{sTM2}, s{sTM2}, {WS_PRG}
        s_add_u32 s{sMINE}, s{sWS}, s{sTMP}
        s_addc_u32 s{sMINE+1}, s{sWS+1}, 0
        s_add_u32 s{sPART}, s{sWS}, s{sTM2}
        s_addc_u32 s{sPART+1}, s{sWS+1}, 0
        """)

    def control(b):
        if not ctl:
            return
        control.n += 1
        n = control.n
        body = []
        if (b - rd - 1) % ctl == 0:
            body.append(f"s_waitcnt lgkmcnt(0)\ns_add_u32 s{sTMP}, s{sPV}, {lag}\ns_cmp_lt_u32 s{sTMP}, s{sTK}\n"
                        f"s_cselect_b32 s{sTHR}, s{sEN}, 0")
        if b % ctl == 0:
            body.append(f"s_add_u32 s{sJ}, s{sJ}, 1\ns_cmp_lg_u32 s{sPUB}, 0\ns_cbranch_scc1 L_np{n}_{L}\n"
                        f"s_and_b32 s{sTMP}, s{sJ}, {NL-1}\ns_lshl_b32 s{sTMP}, s{sTMP}, 7\n"
                        f"s_atomic_umax s{sJ}, s[{sMINE}:{sMINE+1}], s{sTMP}\nL_np{n}_{L}:")
        if (b - rd) % ctl == 0:
            body.append(f"s_and_b32 s{sTMP}, s{sJ}, {NL-1}\ns_lshl_b32 s{sTMP}, s{sTMP}, 7\ns_mov_b32 s{sTK}, s{sJ}\n"
                        f"s_load_dword s{sPV}, s[{sPART}:{sPART+1}], s{sTMP} {pfl}")
        if body:
            a(f"s_cmp_eq_u32 s{sCTL}, 0\ns_cbranch_scc1 L_nc{n}_{L}\n" + "\n".join(body) + f"\nL_nc{n}_{L}:")

    control.n = 0
    sTS = 72

    def tr():
        if trace:
            a(f"""
            s_waitcnt lgkmcnt(0)
            v_writelane_b32 v{vZ2}, s{sTS}, m0
            s_add_u32 m0, m0, 1
            s_memrealtime s[{sTS}:{sTS+1}]
            """)

    if trace:
        a(f"s_waitcnt lgkmcnt(0)\ns_mov_b32 s{sTS}, s{sT}\ns_mov_b32 m0, 0\nv_mov_b32 v{vZ2}, 0")
    a(f"""
    s_mov_b32 s{sIT}, 0
L_kloop_{L}:
    s_cmp_lg_u32 s{sIT}, {NR-1}
    s_cbranch_scc1 L_kgo_{L}
    s_mov_b32 s{sD}, s{sV}
    s_mov_b32 s{sD+1}, s{sV+1}
    s_mov_b32 s{sTI}, 0
    {"s_mov_b32 s%d, 1" % sTHR if zone else ""}
    s_load_dword s{sFLAG}, s[{sDBG}:{sDBG+1}], 0
    """)
    for i in range(4 if gx else 1):
        a(f"v_mov_b32 v{vLN+i}, v{vLV+i}")
    a(f"L_kgo_{L}:")
    if ctl:
        a(f"""
        s_cmp_lg_u32 s{sIT}, {r0}
        s_cbranch_scc1 L_kc2_{L}
        s_cmp_lg_u32 s{sWAVE}, 0
        s_cbranch_scc1 L_kc2_{L}
        s_load_dword s{sEN}, s[{sDBG}:{sDBG+1}], s{sEN}
        s_mov_b32 s{sTK}, 0
        s_mov_b32 s{sCTL}, 1
L_kc2_{L}:
        """)
    tr()
    group_off()
    for b in range(NB):
        if sbar and b % sbar == 0:
            a(f"s_cmp_lt_u32 s{sIT}, {12 // NB}\ns_cbranch_scc1 L_knb{b}_{L}\ns_barrier\nL_knb{b}_{L}:")
        control(b)
        ktile(b)
    a(f"""
    v_add_u32 v{vLA}, {128*NB}, v{vLA}
    s_add_u32 s{sIT}, s{sIT}, 1
    s_cmp_lt_u32 s{sIT}, {NR}
    s_cbranch_scc1 L_kloop_{L}
    v_subrev_u32 v{vLA}, {128*T}, v{vLA}
    v_mov_b32 v{vT2}, v{vM}
    s_waitcnt lgkmcnt(0)
    ds_read_b128 {q4(vS)}, v{vLA}
    v_permlane16_swap_b32 v{vM}, v{vT2}
    v_max_f32 v{vM}, v{vM}, v{vT2}
    v_mov_b32 v{vT2}, v{vM}
    s_nop 1
    v_permlane32_swap_b32 v{vM}, v{vT2}
    v_max_f32 v{vT2}, v{vM}, v{vT2}
    v_mul_f32 v{vT2}, s{sC}, v{vT2}
    s_nop 1
    v_mov_b32_dpp v{vM}, v{vT2} row_newbcast:0 row_mask:0xf bank_mask:0x3
    v_mov_b32_dpp v{vM}, v{vT2} row_newbcast:8 row_mask:0xf bank_mask:0xc
    s_mov_b32 s{sIT}, 1
    {"" if ctl or zone else "s_xor_b32 s%d, s%d, 2" % (sTHR, sTHR)}
    """)
    if mid:
        st(2)
    a(f"L_vloop_{L}:")
    if zone:
        a(f"s_cmp_lt_u32 s{sIT}, {zone}\ns_cselect_b32 s{sTHR}, 1, 0")
    tr()
    group_off()
    for b in range(NB):
        if sbar and b % sbar == 0:
            a("s_barrier")
        control(b)
        vtile(b)
    a(f"""
    v_add_u32 v{vLA}, {128*NB}, v{vLA}
    s_add_u32 s{sIT}, s{sIT}, 1
    s_cmp_lt_u32 s{sIT}, {NR}
    s_cbranch_scc1 L_vloop_{L}
    """)
    tr()
    for b in range(NB):
        vtile(b, NB - b)
    tr()
    tr()
    a(f"s_nop 1\ns_branch L_done_{L}")

    hQ, hK = RING0, RING0 + 16
    clr_code = ""
    if clr:
        clr_code = (f"s_lshl_b32 s{sTMP}, s2, 11\nv_lshl_add_u32 v{vT}, v0, 4, s{sTMP}\nv_lshl_add_u32 v{vZ}, v0, 3, s{sTMP}\n"
                    f"global_store_dwordx4 v{vT}, {q4(vO)}, s[{sWS}:{sWS+1}] sc1\n")
        if clr == 1:
            clr_code += f"global_store_dwordx2 v{vZ}, v[{vO}:{vO+1}], s[{sWS}:{sWS+1}] offset:1024 sc1\n"
        clr_code += "s_waitcnt vmcnt(0)"
    prg_init = ""
    if ctl:
        assert (32 // PG) * 8 * 4 + PRD <= 256
        prg_init = (f"s_and_b32 s{sTMP}, s{sPAIR}, {PG-1}\ns_cmp_lg_u32 s{sTMP}, 0\ns_cbranch_scc1 L_nopi_{L}\n"
                    f"s_lshr_b32 s{sTMP}, s{sPAIR}, {PG.bit_length()-1}\ns_lshl_b32 s{sTMP}, s{sTMP}, 3\n"
                    f"s_add_u32 s{sTMP}, s{sTMP}, s{sSPL}\ns_lshl_b32 s{sTM2}, s{sTMP}, 2\n"
                    f"s_mul_i32 s{sTMP}, s{sTMP}, {NL*128}\ns_add_u32 s{sTMP}, s{sTMP}, {WS_PRG}\n"
                    f"v_lshl_add_u32 v{vT}, v0, 4, s{sTMP}\n")
        for i in range(NL // 8):
            if i and i % 4 == 0:
                prg_init += f"v_add_u32 v{vT}, 0x1000, v{vT}\n"
            prg_init += f"global_store_dwordx4 v{vT}, {q4(vO)}, s[{sWS}:{sWS+1}] offset:{1024*(i % 4)} sc1\n"
        prg_init += (f"v_mov_b32 v{vT}, s{sTM2}\nv_mov_b32 v{vN}, 1\ns_waitcnt vmcnt(0)\n"
                     f"global_store_dword v{vT}, v{vN}, s[{sDBG}:{sDBG+1}] offset:{PRD} sc1\nL_nopi_{L}:")
    tlb_code = ""
    if tlb >= 2:
        tlb_code = f"s_lshl_b32 s{sTMP}, s{sPAIR}, 23\ns_lshl_b32 s{sTM2}, s2, 8\ns_add_u32 s{sTMP}, s{sTMP}, s{sTM2}\n"
        for base in ([sV] if tlb == 2 else [sK, sV]):
            tlb_code += f"s_add_u32 s{sD}, s{base}, s{sTMP}\ns_addc_u32 s{sD+1}, s{base+1}, 0\n"
            for j in range(4):
                tlb_code += f"s_load_dword s{sFLAG}, s[{sD}:{sD+1}], 0\n"
                if j < 3:
                    tlb_code += f"s_add_u32 s{sD}, s{sD}, 0x200000\ns_addc_u32 s{sD+1}, s{sD+1}, 0\n"
    elif tlb:
        tlb_code = (f"s_lshl_b32 s{sTMP}, s{sPAIR}, 23\nv_and_b32 v{vT}, 3, v0\nv_lshl_add_u32 v{vT}, v{vT}, 21, s{sTMP}\n"
                    f"s_lshl_b32 s{sTMP}, s2, 8\nv_add_u32 v{vT}, s{sTMP}, v{vT}\n"
                    f"global_load_dword v{vZ}, v{vT}, s[{sV}:{sV+1}] nt")
    a(f"""
L_help_{L}:
    {"s_setprio 3" if prio else ""}
    v_lshl_add_u32 v{vA}, v{vT2}, 4, v{vA}
    v_and_b32 v0, 63, v0
    v_mov_b32 v{vM}, 0xff800000
    v_mov_b32 v{vL}, 0
    v_mov_b32 v{vO}, 0
    v_mov_b32 v{vO+1}, 0
    v_mov_b32 v{vO+2}, 0
    v_mov_b32 v{vO+3}, 0
    s_mov_b32 s{sC}, {f32(c_scale)}
    s_waitcnt lgkmcnt(0)
    {tlb_code}
    {clr_code}
    s_cmp_lg_u32 s2, 0
    s_cbranch_scc1 L_noinit_{L}
    v_and_b32 v{vT}, 31, v0
    v_mul_u32_u24 v{vT}, {cstr}, v{vT}
    v_add_u32 v{vT}, {WS_CTR}, v{vT}
    global_store_dwordx2 v{vT}, v[{vO}:{vO+1}], s[{sWS}:{sWS+1}] sc1
    v_mov_b32 v{vN}, 1
    s_waitcnt vmcnt(0)
    global_store_dword v{vO}, v{vN}, s[{sDBG}:{sDBG+1}] sc1
L_noinit_{L}:
    {prg_init}
    s_cmp_lg_u32 s{sSPL}, 0
    s_cbranch_scc1 L_done_{L}
    s_lshl_b32 s{sTMP}, s{sPAIR}, 8
    s_lshr_b32 s{sTM2}, s{sPAIR}, 4
    s_lshl_b32 s{sTM2}, s{sTM2}, 1
    v_lshl_add_u32 v{vT}, v{vT2}, 4, s{sTMP}
    v_and_b32 v{vM}, 7, v0
    v_lshl_add_u32 v{vM}, v{vM}, 1, s{sTMP}
    v_lshl_add_u32 v{vM}, v{vT2}, 6, v{vM}
    v_mov_b32 v{vL}, s{sTM2}
    """)
    for i in range(4):
        a(f"global_load_dwordx4 {q4(hQ, i)}, v{vA}, s[{sQ}:{sQ+1}] offset:{64*i}")
    for i in range(4):
        a(f"global_load_dwordx4 {q4(hK, i)}, v{vT}, s[{sKT}:{sKT+1}] offset:{64*i}")
    for r in range(4):
        a(f"global_load_ushort v{vO+r}, v{vM}, s[{sVT}:{sVT+1}] offset:{16*r}")
    a(f"""
    global_load_ushort v{vN}, v{vL}, s[{sMK}:{sMK+1}]
    s_waitcnt vmcnt(0)
    v_mfma_f32_16x16x32_bf16 {q4(vS)}, {q4(hK,0)}, {q4(hQ,0)}, 0
    v_mfma_f32_16x16x32_bf16 {q4(vS)}, {q4(hK,1)}, {q4(hQ,1)}, {q4(vS)}
    v_mfma_f32_16x16x32_bf16 {q4(vS)}, {q4(hK,2)}, {q4(hQ,2)}, {q4(vS)}
    v_mfma_f32_16x16x32_bf16 {q4(vS)}, {q4(hK,3)}, {q4(hQ,3)}, {q4(vS)}
    v_lshlrev_b32 v{vO}, 16, v{vO}
    v_lshlrev_b32 v{vO+1}, 16, v{vO+1}
    v_lshlrev_b32 v{vO+2}, 16, v{vO+2}
    v_lshlrev_b32 v{vO+3}, 16, v{vO+3}
    v_lshlrev_b32 v{vN}, 16, v{vN}
    v_sub_f32 v{vN}, 1.0, v{vN}
    v_mul_f32 v{vN}, {f32(-1e9*math.log2(math.e))}, v{vN}
    v_cmp_gt_u32 vcc, 16, v0
    s_nop 1
    v_cndmask_b32 v{vL}, 0, 1.0, vcc
    v_fma_f32 v{vM}, v{vS}, s{sC}, v{vN}
L_done_{L}:
    """)
    st(3)
    a(f"""
    s_mul_i32 s{sTMP}, s{sWAVE}, 1536
    v_lshlrev_b32 v{vKO}, 4, v0
    v_lshlrev_b32 v{vVO}, 3, v0
    v_add_u32 v{vT}, s{sTMP}, v{vKO}
    v_add_u32 v{vT2}, s{sTMP}, v{vVO}
    ds_write_b128 v{vT}, {q4(vO)}
    ds_write_b64 v{vT2}, v[{vM}:{vL}] offset:1024
    s_cmp_eq_u32 s{sWAVE}, {NW}
    s_waitcnt lgkmcnt(0)
    s_cbranch_scc1 L_end_{L}
    s_barrier
    s_cmp_lg_u32 s{sWAVE}, 0
    s_cbranch_scc1 L_end_{L}
    """)

    def merge(n):
        ML = CB + 4 * n
        a(f"v_max3_f32 v{vM}, v{ML}, v{ML+2}, v{ML+4}")
        i = 3
        while i < n:
            if i + 1 < n:
                a(f"v_max3_f32 v{vM}, v{vM}, v{ML+2*i}, v{ML+2*i+2}")
                i += 2
            else:
                a(f"v_max_f32 v{vM}, v{vM}, v{ML+2*i}")
                i += 1
        for i in range(n):
            a(f"v_sub_f32 v{ML+2*i}, v{ML+2*i}, v{vM}")
        for i in range(n):
            a(f"v_exp_f32 v{ML+2*i}, v{ML+2*i}")
        a("s_waitcnt vmcnt(0) lgkmcnt(0)" if n == S else "s_waitcnt lgkmcnt(0)")
        a(f"v_mul_f32 v{vL}, v{ML}, v{ML+1}")
        for r in range(4):
            a(f"v_mul_f32 v{vO+r}, v{ML}, v{CB+r}")
        for i in range(1, n):
            a(f"v_fmac_f32 v{vL}, v{ML+2*i}, v{ML+2*i+1}")
            for r in range(4):
                a(f"v_fmac_f32 v{vO+r}, v{ML+2*i}, v{CB+4*i+r}")

    for i in range(NP):
        a(f"ds_read_b64 v[{CB+4*NP+2*i}:{CB+4*NP+2*i+1}], v{vVO} offset:{1536*i+1024}")
    for i in range(NP):
        a(f"ds_read_b128 {q4(CB,i)}, v{vKO} offset:{1536*i}")
    a(f"""
    s_lshl_b32 s{sTMP}, s2, 11
    v_add_u32 v{vT}, s{sTMP}, v{vKO}
    v_add_u32 v{vT2}, s{sTMP}, v{vVO}
    s_lshl_b32 s{sTMP}, s{sPAIR}, 14
    v_add_u32 v{vKO}, s{sTMP}, v{vKO}
    v_add_u32 v{vVO}, s{sTMP}, v{vVO}
    s_mul_i32 s{sTMP}, s{sPAIR}, {cstr}
    s_add_u32 s{sTMP}, s{sTMP}, {WS_CTR}
    s_add_u32 s{sCTR}, s{sWS}, s{sTMP}
    s_addc_u32 s{sCTR+1}, s{sWS+1}, 0
    s_mov_b32 s{sTK}, 1
    s_waitcnt lgkmcnt({0 if stamp else NP})
    """)
    merge(NP)
    a(f"""
    global_store_dwordx4 v{vT}, {q4(vO)}, s[{sWS}:{sWS+1}] sc1
    global_store_dwordx2 v{vT2}, v[{vM}:{vL}], s[{sWS}:{sWS+1}] offset:1024 sc1
    """)
    st(4)
    a(f"""
L_rdy_{L}:
    s_cmp_lg_u32 s{sFLAG}, 0
    s_cbranch_scc1 L_go_{L}
    s_atomic_add s{sFLAG}, s[{sDBG}:{sDBG+1}], 0 glc
    s_waitcnt lgkmcnt(0)
    s_branch L_rdy_{L}
L_go_{L}:
    s_waitcnt vmcnt(0)
    s_atomic_add s{sTK}, s[{sCTR}:{sCTR+1}], 4 glc
    s_waitcnt lgkmcnt(0)
    """)
    st(5)

    def dump():
        if diag:
            a(f"s_branch L_diag_{L}")
            return
        trace_store = ""
        if trace:
            trace_store = (f"s_lshl_b32 s{sTM2}, s2, 8\ns_add_u32 s{sTM2}, s{sTM2}, {WS_STAMP + 0x10000}\n"
                           f"v_lshl_add_u32 v{vT2}, v0, 2, s{sTM2}\nglobal_store_dword v{vT2}, v{vZ2}, s[{sWS}:{sWS+1}]")
        a(f"""
        s_getreg_b32 s{sTMP}, hwreg(HW_REG_XCC_ID)
        s_waitcnt lgkmcnt(0)
        v_mov_b32 v{vS}, s{sT}
        v_mov_b32 v{vS+1}, s{sT+12}
        v_mov_b32 v{vS+2}, s{sTMP}
        v_mov_b32 v{vS+3}, s{sTK}
L_hold_{L}:
        s_memrealtime s[{sPC}:{sPC+1}]
        s_waitcnt lgkmcnt(0)
        s_sub_u32 s{sPC}, s{sPC}, s{sT}
        s_cmp_lt_u32 s{sPC}, 9000
        s_cbranch_scc1 L_hold_{L}
        s_lshl_b32 s{sTMP}, s2, 4
        s_add_u32 s{sTMP}, s{sTMP}, {WS_STAMP}
        v_mov_b32 v{vT}, s{sTMP}
        {trace_store}
        s_mov_b64 exec, 1
        global_store_dwordx4 v{vT}, {q4(vS)}, s[{sWS}:{sWS+1}]
        s_lshl_b32 s{sTMP}, s2, 5
        s_add_u32 s{sTMP}, s{sTMP}, {WS_STAMP + 0x1000}
        v_mov_b32 v{vT}, s{sTMP}
        """)
        for i in range(7):
            a(f"v_mov_b32 v{vT2}, s{sT+2*i}\nglobal_store_dword v{vT}, v{vT2}, s[{sWS}:{sWS+1}] offset:{4*i}")

    a(f"s_cmp_lg_u32 s{sTK}, {S-1}\ns_cbranch_scc1 {'L_notlast_' if stamp else 'L_end_'}{L}")
    a(f"""
    v_add_u32 v{vT}, 0x1000, v{vVO}
    v_add_u32 v{vT2}, 0x3000, v{vVO}
    v_add_u32 v{vA}, 0x1000, v{vKO}
    v_add_u32 v{vN}, 0x3000, v{vKO}
    """)
    for i in range(S):
        reg, o = (vT, 2048 * i - 4096) if i < 4 else (vT2, 2048 * i - 12288)
        a(f"global_load_dwordx2 v[{CB+4*S+2*i}:{CB+4*S+2*i+1}], v{reg}, s[{sWS}:{sWS+1}] offset:{o+1024} sc1")
    for i in range(S):
        reg, o = (vA, 2048 * i - 4096) if i < 4 else (vN, 2048 * i - 12288)
        a(f"global_load_dwordx4 {q4(CB,i)}, v{reg}, s[{sWS}:{sWS+1}] offset:{o} sc1")
    a(f"""
    v_bfe_u32 v{vT}, v0, 3, 1
    v_lshl_add_u32 v{vA}, v{vT}, 8, s{sP9}
    v_lshrrev_b32 v{vT}, 4, v0
    v_lshl_add_u32 v{vA}, v{vT}, 6, v{vA}
    v_and_b32 v{vT}, 7, v0
    v_lshl_add_u32 v{vA}, v{vT}, 1, v{vA}
    s_waitcnt vmcnt({S})
    """)
    merge(S)
    a(f"""
    v_mov_b32 v{vT2}, v{vL}
    s_nop 1
    v_permlane16_swap_b32 v{vL}, v{vT2}
    v_add_f32 v{vL}, v{vL}, v{vT2}
    v_mov_b32 v{vT2}, v{vL}
    s_nop 1
    v_permlane32_swap_b32 v{vL}, v{vT2}
    v_add_f32 v{vL}, v{vL}, v{vT2}
    v_rcp_f32 v{vL}, v{vL}
    s_nop 0
    v_mul_f32 v{vO}, v{vO}, v{vL}
    v_mul_f32 v{vO+1}, v{vO+1}, v{vL}
    v_mul_f32 v{vO+2}, v{vO+2}, v{vL}
    v_mul_f32 v{vO+3}, v{vO+3}, v{vL}
    v_cvt_pk_bf16_f32 v{vO}, v{vO}, v{vO+1}
    v_cvt_pk_bf16_f32 v{vO+2}, v{vO+2}, v{vO+3}
    global_store_short v{vA}, v{vO}, s[{sOUT}:{sOUT+1}] {oflags}
    global_store_short_d16_hi v{vA}, v{vO}, s[{sOUT}:{sOUT+1}] offset:16 {oflags}
    global_store_short v{vA}, v{vO+2}, s[{sOUT}:{sOUT+1}] offset:32 {oflags}
    global_store_short_d16_hi v{vA}, v{vO+2}, s[{sOUT}:{sOUT+1}] offset:48 {oflags}
    """)
    if stamp:
        a(f"L_notlast_{L}:")
        st(6)
        dump()
    if diag:
        a(f"L_diag_{L}:")
        diag_tail(a, L, sDBG, sT, sT + 2 * int(diag[-1]), 66, diag[:-1])
    a(f"L_end_{L}:\ns_endpgm")
    lds = SCL + NW * 128 * T
    return dict(label=label, body=a.text(), grid=NWG, block=64 * NP, lds=lds, nvgpr=nv, acc=(nv + 3) // 4 * 4,
                nsgpr=102 if table else 76 if stamp or ctl else 52)


if __name__ == "__main__":
    k = gen(NAME + "_kernel")
    sys.stdout.write(final_file(k))
```

```python
import math
import sys

from diag import diag_tail
from gen1 import Asm, NAME, bench_file, f32, final_file, kernel_text, meta
from gen4 import NAMES, parse_map
from gen5 import MAPS

WS_ML = 0x80000
WS_CTR = 0x100000
WS_RNK = 0x110000
WS_STAMP = 0x1000000


def gen(label, amap="l1", flags="nt", stamp=0, sbar=4, diag="", table=0, thr=3, zt=3, skew=2, sx=0, sy=2, sy1=0,
        sy3=0, el=2, early=0, bskip=4, xfl="sc1", clrp=0, otouch=0, oflags="", fake=0, rk="", rlv="64210000", rw=16, rthr=3, kk=-1, klv="88422000", kw=8, ez=0, ethr=3, trace=0, dbuf=0, pk=0, bmask=0, qpos=0, qt=0):
    NW, S, T, NB = 4, 8, 64, 4
    NWG = 32 * S
    NR = T // NB
    if diag:
        stamp = 1
    W = parse_map(MAPS.get(amap, amap))
    TB = ["b", "t0", "t1", "t2", "t3", "t4"]
    sW = 76
    rows = [W["r%d" % j] for j in range(4)]
    plain = all(v & (v - 1) == 0 for v in rows) and all(W[n] & sum(rows) == 0 for n in NAMES[:16])
    gx = table or not (plain and W["r0"] + W["r1"] < 4096)

    def wt(n):
        if table:
            i = NAMES.index(n)
            return f"s{sW + i + (1 if i >= 16 else 0)}"
        return f"{W[n]:#x}"

    c_scale = (128 ** -0.5) * math.log2(math.e)

    vLA = 1
    vZ, vZ2 = 2, 3
    vO = 4
    vM, vL = 8, 9
    vT, vT2, vA, vN = 10, 11, 12, 13
    vPO, vPM = 14, 15
    vS = 16
    vQ = 24
    vMASK = 28
    vB = 32
    vLN = 48
    vLV = 52
    vAD = 56
    RING0 = 64
    vXO, vXM = RING0, RING0 + 28
    vAO, vAM = 48, 55
    vS2 = RING0 + 16 * NB
    vB2 = vS2 + 8
    vTR = vB2 + 16
    nv = vTR + 4 if trace else vB2 + 16 if dbuf else vB2

    def ring(b, i):
        o = RING0 + 16 * b + 4 * i
        return "v[%d:%d]" % (o, o + 3)

    def q4(base, i=0):
        return "v[%d:%d]" % (base + 4 * i, base + 4 * i + 3)

    sQ, sK, sV, sKT, sVT, sMK, sOUT, sDBG, sWS = 4, 6, 8, 10, 12, 14, 16, 18, 20
    sEX = 22
    sD = 24
    sNAN = 28
    sSK = 31
    sPAIR, sSPL, sWAVE, sOFF, sC, sIT, sTMP, sP9 = 32, 33, 34, 35, 36, 37, 38, 39
    sTI, sCLR, sTK, sFLAG, sTM2, sWB = 40, 41, 42, 44, 45, 47
    sRM, sRK, sRC = 43, 46, 66
    sPC = 48
    sCTR = 50
    sT = 52
    L = label
    LMX, LTR, LFO, LFL, SCL = 0, 1280, 2304, 6400, 7424
    a = Asm()

    def st(i):
        if stamp:
            a(f"s_memrealtime s[{sT+2*i}:{sT+2*i+1}]")

    def xor_bits(dst, init, src, names):
        cur = init
        for j, n in enumerate(names):
            if not table and W[n] == 0:
                continue
            a(f"s_bitcmp1_b32 s{src}, {j}")
            if cur is None:
                a(f"s_cselect_b32 s{dst}, {wt(n)}, 0")
            else:
                a(f"s_cselect_b32 s{sTMP}, {wt(n)}, 0\ns_xor_b32 s{dst}, s{cur}, s{sTMP}")
            cur = dst

    def group_off():
        xor_bits(sOFF, sWB, sTI, TB[2:])
        if table:
            a(f"s_and_b32 s{sOFF}, s{sOFF}, 0x7fff00")
        a(f"s_add_u32 s{sTI}, s{sTI}, 1")

    def addr(b):
        if b:
            a(f"s_xor_b32 s{sOFF}, s{sOFF}, s{sSK}")
        if b == 2:
            a(f"s_xor_b32 s{sOFF}, s{sOFF}, {wt('t0')}")
        if gx:
            for i in range(4):
                a(f"v_xor_b32 v{vAD + 4*(b & 1) + i}, s{sOFF}, v{vLN + i}")

    def issue(b):
        for i in range(4):
            if gx:
                a(f"buffer_load_dwordx4 {ring(b,i)}, v{vAD + 4*(b & 1) + i}, s[{sD}:{sD+3}], 0 offen {flags}")
            else:
                o = (i & 1) * W["r0"] + (i >> 1) * W["r1"]
                a(f"buffer_load_dwordx4 {ring(b,i)}, v{vLN}, s[{sD}:{sD+3}], s{sOFF} offen offset:{o} {flags}")

    def lane_rows(dst, bit):
        if not gx and W["r3"] == W["r2"] << 1:
            a(f"v_bfe_u32 v{vZ}, v0, {bit}, 2\nv_lshl_add_u32 v{dst}, v{vZ}, {W['r2'].bit_length() - 1}, v{dst}")
        else:
            for j in range(2):
                a(f"v_bfe_i32 v{vZ}, v0, {bit + j}, 1\nv_and_b32 v{vZ}, {wt('r%d' % (2 + j))}, v{vZ}\n"
                  f"v_xor_b32 v{dst}, v{dst}, v{vZ}")
        if gx:
            a(f"v_xor_b32 v{dst+1}, {wt('r0')}, v{dst}\nv_xor_b32 v{dst+2}, {wt('r1')}, v{dst}\n"
              f"v_xor_b32 v{dst+3}, {wt('r1')}, v{dst+1}")

    def skw(mask):
        v = 0
        for j, n in enumerate("ABC"):
            if mask >> j & 1:
                v ^= W[n]
        return v

    def lane_sum(reg, op):
        a(f"""
        v_mov_b32 v{vT2}, v{reg}
        s_nop 1
        v_permlane16_swap_b32 v{reg}, v{vT2}
        {op} v{reg}, v{reg}, v{vT2}
        v_mov_b32 v{vT2}, v{reg}
        s_nop 1
        v_permlane32_swap_b32 v{reg}, v{vT2}
        {op} v{reg}, v{reg}, v{vT2}
        """)

    a(f"""
    s_cmp_ge_u32 s2, {NWG}
    s_cbranch_scc1 L_end_{L}
    s_load_dwordx16 s[4:19], s[0:1], 0
    s_load_dwordx2 s[20:21], s[0:1], 64
    """)
    st(0)
    a(f"""
    v_lshrrev_b32 v{vN}, 6, v0
    s_and_b32 s{sSPL}, s2, 7
    s_lshr_b32 s{sPAIR}, s2, 3
    v_readfirstlane_b32 s{sWAVE}, v{vN}
    v_bfe_u32 v{vT2}, v0, 4, 2
    s_lshl_b32 s{sP9}, s{sPAIR}, 9
    v_bfe_u32 v{vA}, v0, 3, 1
    v_lshl_add_u32 v{vA}, v{vA}, 8, s{sP9}
    s_cmp_eq_u32 s{sWAVE}, {NW}
    s_cbranch_scc1 L_help_{L}
    """)
    if table:
        a(f"""
        s_waitcnt lgkmcnt(0)
        s_load_dwordx16 s[{sW}:{sW+15}], s[{sDBG}:{sDBG+1}], 64
        s_load_dwordx8 s[{sW+16}:{sW+23}], s[{sDBG}:{sDBG+1}], 128
        s_waitcnt lgkmcnt(0)
        """)
        xor_bits(sWB, None, sWAVE, ["w0", "w1"])
        a(f"s_cmp_eq_u32 s{sWAVE}, 3\ns_cselect_b32 s{sTMP}, s{sW+16}, 0\ns_xor_b32 s{sWB}, s{sWB}, s{sTMP}")
    else:
        x3 = W["w0"] ^ W["w1"] ^ (skw(sx) if skew else 0)
        a(f"s_cmp_eq_u32 s{sWAVE}, 1\ns_cselect_b32 s{sWB}, {W['w0']:#x}, 0")
        a(f"s_cmp_eq_u32 s{sWAVE}, 2\ns_cselect_b32 s{sWB}, {W['w1']:#x}, s{sWB}")
        a(f"s_cmp_eq_u32 s{sWAVE}, 3\ns_cselect_b32 s{sWB}, {x3:#x}, s{sWB}")
    xor_bits(sWB, sWB, 2, list("ABCDEFGH"))
    if table:
        a(f"s_and_b32 s{sWB}, s{sWB}, 0x7fff00")
    a(f"""
    v_and_b32 v{vT}, 3, v0
    v_lshlrev_b32 v{vT}, 4, v{vT}
    v_lshl_add_u32 v{vLN}, v{vT2}, 6, v{vT}
    v_add_u32 v{vA}, v{vA}, v{vLN}
    """)
    lane_rows(vLN, 2)
    a(f"""
    s_mov_b32 s{sOFF}, s{sWB}
    s_lshl_b32 s{sTMP}, s{sPAIR}, 23
    s_mov_b32 s{sD+2}, 0x800000
    s_mov_b32 s{sD+3}, 0x20000
    """)
    addr(0)
    a(f"""
    s_waitcnt lgkmcnt(0)
    s_add_u32 s{sD}, s{sK}, s{sTMP}
    s_addc_u32 s{sD+1}, s{sK+1}, 0
    """)
    st(1)
    if qt:
        a(f"s_load_dword s{sTM2}, s[{sQ}:{sQ+1}], 0")
    if qpos == 0:
        a(f"global_load_dwordx4 {q4(vQ)}, v{vA}, s[{sQ}:{sQ+1}]")
    issue(0)
    if qpos == 1:
        a(f"global_load_dwordx4 {q4(vQ)}, v{vA}, s[{sQ}:{sQ+1}]")
    a(f"s_add_u32 s{sV}, s{sV}, s{sTMP}\ns_addc_u32 s{sV+1}, s{sV+1}, 0")
    if table:
        a(f"s_mov_b32 s{sSK}, 0")
        for w, word in ((2, 21), (1, 22), (3, 23)):
            a(f"s_cmp_eq_u32 s{sWAVE}, {w}\ns_cselect_b32 s{sSK}, s{sW+word}, s{sSK}")
        a(f"s_xor_b32 s{sSK}, s{sSK}, {wt('b')}")
    else:
        a(f"s_mov_b32 s{sSK}, {W['b']:#x}")
        for w, mask in ((2, sy), (1, sy1), (3, sy3)):
            if skew >= 2 and mask:
                a(f"s_cmp_eq_u32 s{sWAVE}, {w}\ns_cselect_b32 s{sSK}, {W['b'] ^ skw(mask):#x}, s{sSK}")
    for b in range(1, NB):
        addr(b)
        issue(b)
        if qpos == b + 1:
            a(f"global_load_dwordx4 {q4(vQ)}, v{vA}, s[{sQ}:{sQ+1}]")
    a(f"v_and_b32 v{vLV}, 15, v0\nv_lshlrev_b32 v{vLV}, 4, v{vLV}")
    lane_rows(vLV, 4)
    a(f"""
    s_mov_b32 s{sTI}, 1
    s_mov_b32 s{sC}, {f32(c_scale)}
    s_mov_b32 s{sEX}, 0x01010101
    s_mov_b32 s{sEX+1}, 0x01010101
    s_lshl_b32 s{sTMP}, s{sPAIR}, 8
    s_add_u32 s{sTMP}, s{sTMP}, {WS_CTR}
    s_add_u32 s{sCTR}, s{sWS}, s{sTMP}
    s_addc_u32 s{sCTR+1}, s{sWS+1}, 0
    s_mov_b32 s{sTK}, 1
    s_lshl_b32 s{sTMP}, s{sWAVE}, 13
    s_add_u32 s{sTMP}, s{sTMP}, {SCL}
    v_bfe_u32 v{vLA}, v0, 3, 1
    v_lshl_add_u32 v{vLA}, v{vLA}, 6, s{sTMP}
    v_lshl_add_u32 v{vLA}, v{vT2}, 4, v{vLA}
    v_lshlrev_b32 v{vZ2}, 2, v0
    v_and_b32 v0, 63, v0
    v_mov_b32 v{vM}, 0xff800000
    v_mov_b32 v{vL}, 0
    v_mov_b32 v{vO}, 0
    v_mov_b32 v{vO+1}, 0
    v_mov_b32 v{vO+2}, 0
    v_mov_b32 v{vO+3}, 0
    v_and_b32 v{vT}, 1, v0
    v_lshlrev_b32 v{vT}, 4, v{vT}
    v_mov_b32 v{vA}, 0xffff
    v_lshlrev_b32 v{vA}, v{vT}, v{vA}
    v_bfe_u32 v{vT}, v0, 1, 2
    """)
    for r in range(4):
        a(f"v_cmp_eq_u32 vcc, {r}, v{vT}\ns_nop 1\nv_cndmask_b32 v{vMASK+r}, 0, v{vA}, vcc")
    steady = 4 * (NB - 1)
    if qpos > 1:
        a(f"s_waitcnt vmcnt({4 * (NB - qpos)})")
    if qt:
        a("s_waitcnt lgkmcnt(0)")
    if stamp:
        a(f"s_waitcnt vmcnt({steady})")
    st(2)

    vchk = [int(x) for x in str(rk).lstrip("r").split("_") if x]
    ranked = bool(vchk) or kk >= 0
    SPREAD = [0x00, 0x01, 0x11, 0x49, 0x55, 0x6d, 0x77, 0x7f, 0xff]

    def rank_ask(tag, it, word):
        a(f"""
        s_cmp_lg_u32 s{sIT}, {it}
        s_cbranch_scc1 L_ra{tag}_{L}
        s_mov_b32 s{sRK}, 7
        s_cmp_eq_u32 s{sFLAG}, 0
        s_cbranch_scc1 L_ra{tag}_{L}
        s_mov_b32 s{sRK}, 1
        s_atomic_add s{sRK}, s[{sRC}:{sRC+1}], {4*word} glc
L_ra{tag}_{L}:
        """)

    def rank_use(tag, it, levels, window, front):
        pats = [((1 << int(c)) - 1) if front else SPREAD[int(c)] for c in str(levels).lstrip("l")]
        lo = sum(p << (8 * i) for i, p in enumerate(pats[:4]))
        hi = sum(p << (8 * i) for i, p in enumerate(pats[4:]))
        rep = 1 if front else sum(1 << (8 * i) for i in range(window // 8))
        a(f"""
        s_cmp_lg_u32 s{sIT}, {it}
        s_cbranch_scc1 L_ru{tag}_{L}
        s_waitcnt lgkmcnt(0)
        s_mov_b32 s{sNAN}, {lo:#x}
        s_mov_b32 s{sNAN+1}, {hi:#x}
        s_lshl_b32 s{sRK}, s{sRK}, 3
        s_lshr_b64 s[{sNAN}:{sNAN+1}], s[{sNAN}:{sNAN+1}], s{sRK}
        s_and_b32 s{sRM}, s{sNAN}, 0xff
        s_mul_i32 s{sRM}, s{sRM}, {rep:#x}
L_ru{tag}_{L}:
        """)

    def paced(tag, level):
        a(f"s_bitcmp0_b32 s{sRM}, 0\ns_cbranch_scc1 L_pc{tag}_{L}\ns_waitcnt vmcnt({level})\nL_pc{tag}_{L}:\n"
          f"s_lshr_b32 s{sRM}, s{sRM}, 1")

    if ranked:
        a(f"""
        s_mov_b32 s{sRM}, 0
        s_mov_b32 s{sFLAG}, 0
        s_lshl_b32 s{sTMP}, s{sPAIR}, 2
        s_add_u32 s{sTMP}, s{sTMP}, s{sWAVE}
        s_lshl_b32 s{sTMP}, s{sTMP}, 8
        s_add_u32 s{sTMP}, s{sTMP}, {WS_RNK}
        s_add_u32 s{sRC}, s{sWS}, s{sTMP}
        s_addc_u32 s{sRC+1}, s{sWS+1}, 0
        """)

    sTS = 72

    def tr(tag, lo, hi):
        if trace:
            a(f"""
            s_sub_u32 s{sTMP}, s{sIT}, {lo}
            s_cmp_gt_u32 s{sTMP}, {hi - lo}
            s_cbranch_scc1 L_tr{tag}_{L}
            s_waitcnt lgkmcnt(0)
            v_writelane_b32 v{vTR}, s{sTS}, m0
            s_add_u32 m0, m0, 1
            s_memrealtime s[{sTS}:{sTS+1}]
L_tr{tag}_{L}:
            """)

    if trace:
        a(f"s_waitcnt lgkmcnt(0)\ns_mov_b32 s{sTS}, s{sT}\ns_mov_b32 m0, 0\nv_mov_b32 v{vTR}, 0")

    def ktile(b):
        tr(f"k{b}", *((13, 15) if trace == 1 else (0, 6)))
        addr(b)
        a(f"s_waitcnt vmcnt({steady})")
        for i in range(4):
            a(f"v_mfma_f32_16x16x32_bf16 {q4(vB,i)}, {ring(b,i)}, {q4(vQ)}, 0")
        if kk >= 0:
            paced(f"k{b}", thr)
        elif b < zt:
            a(f"s_cmp_lg_u32 s{sIT}, {NR-1}\ns_cbranch_scc1 L_nt{b}_{L}\ns_waitcnt vmcnt({thr})\nL_nt{b}_{L}:")
        issue(b)
        a("s_nop 0")
        sq = vS + 4 * (b & 1)
        for q in range(1, 4):
            for i in range(4):
                d = vB + 4 * i
                a(f"v_add_f32_dpp v{sq+i}, v{d+q}, v{d if q == 1 else sq+i} quad_perm:[{q},{q},{q},{q}] "
                  "row_mask:0xf bank_mask:0xf")
        a(f"""
        v_max3_f32 v{vM}, v{vM}, v{sq}, v{sq+1}
        v_max3_f32 v{vM}, v{vM}, v{sq+2}, v{sq+3}
        s_mov_b64 exec, s[{sEX}:{sEX+1}]
        ds_write_b128 v{vLA}, {q4(sq)} offset:{128*b}
        s_mov_b64 exec, -1
        """)

    def fetch_others():
        for i in range(7):
            a(f"global_load_dwordx2 v[{vXM+2*i}:{vXM+2*i+1}], v{vAM+i}, s[{sWS}:{sWS+1}] {xfl}")
        for i in range(7):
            a(f"global_load_dwordx4 {q4(vXO,i)}, v{vAO+i}, s[{sWS}:{sWS+1}] {xfl}")

    def elect():
        a(f"""
        s_cmp_lg_u32 s{sWAVE}, 0
        s_cbranch_scc1 L_noel_{L}
L_rdy_{L}:
        s_cmp_lg_u32 s{sFLAG}, 0
        s_cbranch_scc1 L_go_{L}
        s_atomic_add s{sFLAG}, s[{sDBG}:{sDBG+1}], 0 glc
        s_waitcnt lgkmcnt(0)
        s_branch L_rdy_{L}
L_go_{L}:
        s_atomic_add s{sTK}, s[{sCTR}:{sCTR+1}], 0 glc
L_noel_{L}:
        """)

    def vtile(b, left=0):
        if left:
            sq = [vS, vS + 4, vS2, vS2 + 4][b]
            if b < 2:
                a("s_waitcnt lgkmcnt(0)")
            if b == 0:
                for j, q in ((1, vS + 4), (2, vS2), (3, vS2 + 4)):
                    a(f"ds_read_b128 {q4(q)}, v{vLA} offset:{128*j}")
            if left == el:
                elect()
        else:
            tr(f"v{b}", *((1, 4) if trace == 1 else (99, 99)))
            sq = vS + 4 * (b & 1)
            a(f"s_waitcnt lgkmcnt(0)\nds_read_b128 {q4(vS + 4 * ((b + 1) & 1))}, v{vLA} offset:{128*(b+1)}")
        for r in range(4):
            a(f"v_fma_f32 v{sq+r}, v{sq+r}, s{sC}, -v{vM}")
        for r in range(4):
            a(f"v_exp_f32 v{sq+r}, v{sq+r}")
        if not left:
            addr(b)
        a("s_nop 0")
        for r in range(4):
            a(f"v_add_f32 v{vL}, v{vL}, v{sq+r}")
        for r in range(4):
            a(f"v_cvt_pk_bf16_f32 v{sq+r}, v{sq+r}, v{sq+r}")
        for r in range(4):
            for j in range(4):
                a(f"v_and_b32 v{vB+4*r+j}, v{vMASK+j}, v{sq+r}")
        if left == 1:
            lane_sum(vL, "v_add_f32")
            a(f"ds_write_b32 v{vZ2}, v{vL} offset:{LFL}")
            if early:
                a(f"s_waitcnt lgkmcnt(0)\ns_cmp_lg_u32 s{sTK}, {S-1}\ns_cbranch_scc1 L_nol1_{L}")
                fetch_others()
                a(f"s_waitcnt vmcnt(14)\ns_branch L_l1w_{L}\nL_nol1_{L}:\ns_waitcnt vmcnt(0)\nL_l1w_{L}:")
            else:
                a("s_waitcnt vmcnt(0)")
        else:
            a(f"s_waitcnt vmcnt({4*(left-1) if left else steady})\ns_nop 0")
        for r in range(4):
            a(f"v_mfma_f32_16x16x32_bf16 {q4(vO)}, {ring(b,r)}, {q4(vB,r)}, {q4(vO)}")
        if not left:
            if ranked:
                paced(f"v{b}", rthr)
            if b < zt - 4:
                a(f"s_cmp_lg_u32 s{sIT}, 1\ns_cbranch_scc1 L_vz{b}_{L}\ns_waitcnt vmcnt({thr})\nL_vz{b}_{L}:")
            if ez:
                first = NR - 1 - (ez - 1 - (3 - b)) // 4 if ez > 3 - b else NR
                if first < NR:
                    a(f"s_cmp_lt_u32 s{sIT}, {first}\ns_cbranch_scc1 L_ez{b}_{L}\ns_waitcnt vmcnt({ethr})\nL_ez{b}_{L}:")
            issue(b)

    a(f"""
    s_mov_b32 s{sIT}, 0
L_kloop_{L}:
    """)
    if kk >= 0:
        a(f"s_cmp_lg_u32 s{sIT}, 8\ns_cbranch_scc1 L_kfl_{L}\ns_load_dword s{sFLAG}, s[{sDBG}:{sDBG+1}], 0\n"
          f"s_waitcnt lgkmcnt(0)\nL_kfl_{L}:")
        rank_use("k", NR - 1, klv, kw, True)
        rank_ask("k", kk, 3)
    a(f"""
    s_cmp_lg_u32 s{sIT}, {NR-1}
    s_cbranch_scc1 L_kgo_{L}
    s_mov_b32 s{sD}, s{sV}
    s_mov_b32 s{sD+1}, s{sV+1}
    s_mov_b32 s{sTI}, 0
    s_load_dword s{sFLAG}, s[{sDBG}:{sDBG+1}], 0
    """)
    for i in range(4 if gx else 1):
        a(f"v_mov_b32 v{vLN+i}, v{vLV+i}")
    a(f"L_kgo_{L}:")
    group_off()
    assert sbar
    for b in range(NB):
        if b % sbar == 0:
            a(f"s_cmp_lt_u32 s{sIT}, {bskip}\ns_cbranch_scc1 L_knb{b}_{L}")
            if bmask:
                a(f"s_and_b32 s{sTMP}, s{sIT}, {bmask}\ns_cbranch_scc1 L_knb{b}_{L}")
            a(f"s_barrier\nL_knb{b}_{L}:")
        ktile(b)
    a(f"""
    v_add_u32 v{vLA}, {128*NB}, v{vLA}
    s_add_u32 s{sIT}, s{sIT}, 1
    s_cmp_lt_u32 s{sIT}, {NR}
    s_cbranch_scc1 L_kloop_{L}
    v_subrev_u32 v{vLA}, {128*T}, v{vLA}
    """)
    lane_sum(vM, "v_max_f32")
    a(f"""
    v_mul_f32 v{vT2}, s{sC}, v{vM}
    v_lshlrev_b32 v{vT}, 2, v0
    v_lshlrev_b32 v{vZ}, 4, v0
    v_mov_b32_dpp v{vM}, v{vT2} row_newbcast:0 row_mask:0xf bank_mask:0x3
    s_nop 1
    v_mov_b32_dpp v{vM}, v{vT2} row_newbcast:8 row_mask:0xf bank_mask:0xc
    ds_write_b32 v{vZ2}, v{vM} offset:{LMX}
    s_waitcnt lgkmcnt(0)
    s_barrier
    """)
    for i in range(NW + 1):
        a(f"ds_read_b32 v{vB+i}, v{vT} offset:{LMX + 256*i}")
    a(f"""
    ds_read_b128 {q4(vB,2)}, v{vZ} offset:{LTR}
    ds_read_b128 {q4(vS)}, v{vLA}
    s_mov_b32 s{sIT}, 1
    s_cmp_lg_u32 s{sWAVE}, 0
    s_waitcnt lgkmcnt({0 if trace else 1})
    v_max3_f32 v{vM}, v{vB}, v{vB+1}, v{vB+2}
    v_max3_f32 v{vM}, v{vM}, v{vB+3}, v{vB+4}
    s_cbranch_scc1 L_vloop_{L}
    v_sub_f32 v{vT}, v{vB+4}, v{vM}
    v_exp_f32 v{vT}, v{vT}
    v_cmp_gt_u32 vcc, 16, v0
    v_mul_f32 v{vO}, v{vT}, v{vB+8}
    v_mul_f32 v{vO+1}, v{vT}, v{vB+9}
    v_mul_f32 v{vO+2}, v{vT}, v{vB+10}
    v_mul_f32 v{vO+3}, v{vT}, v{vB+11}
    v_cndmask_b32 v{vL}, 0, v{vT}, vcc
L_vloop_{L}:
    """)
    for n, it in enumerate(vchk):
        rank_use(f"v{n}", it + 1, rlv, rw, False)
        rank_ask(f"v{n}", it, n)
    group_off()
    for b in range(NB):
        if b % sbar == 0:
            if bmask:
                a(f"s_and_b32 s{sTMP}, s{sIT}, {bmask}\ns_cbranch_scc1 L_vnb{b}_{L}\ns_barrier\nL_vnb{b}_{L}:")
            else:
                a("s_barrier")
        vtile(b)
    a(f"""
    v_add_u32 v{vLA}, {128*NB}, v{vLA}
    s_add_u32 s{sIT}, s{sIT}, 1
    s_cmp_lt_u32 s{sIT}, {NR}
    s_cbranch_scc1 L_vloop_{L}
    """)
    quads = [vS, vS + 4, vS2, vS2 + 4]

    def probs(sq):
        for r in range(4):
            a(f"v_fma_f32 v{sq+r}, v{sq+r}, s{sC}, -v{vM}")
        for r in range(4):
            a(f"v_exp_f32 v{sq+r}, v{sq+r}")
        a("s_nop 0")
        for r in range(4):
            a(f"v_add_f32 v{vL}, v{vL}, v{sq+r}")
        for r in range(4):
            a(f"v_cvt_pk_bf16_f32 v{sq+r}, v{sq+r}, v{sq+r}")

    def frags(dst, sq):
        for r in range(4):
            for j in range(4):
                a(f"v_and_b32 v{dst+4*r+j}, v{vMASK+j}, v{sq+r}")

    def pv(b, src):
        a(f"s_waitcnt vmcnt({4*(3-b)})")
        for r in range(4):
            a(f"v_mfma_f32_16x16x32_bf16 {q4(vO)}, {ring(b,r)}, {q4(src,r)}, {q4(vO)}")

    if dbuf:
        for j in range(1, 4):
            a(f"ds_read_b128 {q4(quads[j])}, v{vLA} offset:{128*j}")
        a("s_waitcnt lgkmcnt(0)" if trace else "s_waitcnt lgkmcnt(3)")
        probs(quads[0])
        frags(vB, quads[0])
        a("s_waitcnt lgkmcnt(0)")
        probs(quads[1])
        frags(vB2, quads[1])
        pv(0, vB)
        if el == 3:
            elect()
        probs(quads[2])
        probs(quads[3])
        frags(vB, quads[2])
        lane_sum(vL, "v_add_f32")
        a(f"ds_write_b32 v{vZ2}, v{vL} offset:{LFL}")
    else:
        vtile(0, 4)
    a(f"""
    s_lshl_b32 s{sTMP}, s2, 10
    v_lshl_add_u32 v{vPO}, v0, 4, s{sTMP}
    s_lshl_b32 s{sTMP}, s{sPAIR}, 8
    s_lshl_b32 s{sTM2}, s{sSPL}, 4
    s_add_u32 s{sTMP}, s{sTMP}, s{sTM2}
    s_add_u32 s{sTMP}, s{sTMP}, {WS_ML}
    v_and_b32 v{vPM}, 8, v0
    v_add_u32 v{vPM}, s{sTMP}, v{vPM}
    """)
    for i in range(7):
        a(f"v_xor_b32 v{vAO+i}, {(i+1) << 10:#x}, v{vPO}\nv_xor_b32 v{vAM+i}, {(i+1) << 4:#x}, v{vPM}")
    a(f"""
    v_bfe_u32 v{vT}, v0, 3, 1
    v_lshl_add_u32 v{vA}, v{vT}, 8, s{sP9}
    v_lshrrev_b32 v{vT}, 4, v0
    v_lshl_add_u32 v{vA}, v{vT}, 6, v{vA}
    v_and_b32 v{vT}, 7, v0
    v_lshl_add_u32 v{vA}, v{vT}, 1, v{vA}
    v_lshlrev_b32 v{vN}, 2, v{vZ2}
    """)
    if otouch == 1:
        a(f"s_load_dword s{sTM2}, s[{sOUT}:{sOUT+1}], s{sP9}")
    if dbuf:
        assert not early
        pv(1, vB2)
        if el == 2:
            elect()
        frags(vB2, quads[3])
        pv(2, vB)
        if el == 1:
            elect()
        pv(3, vB2)
    else:
        for b in range(1, NB):
            vtile(b, NB - b)
    st(3)
    a(f"""
    s_cmp_eq_u32 s{sWAVE}, 0
    s_cbranch_scc1 L_w0_{L}
    s_nop 5
    ds_write_b128 v{vN}, {q4(vO)} offset:{LFO}
    s_waitcnt lgkmcnt(0)
    s_barrier
    s_endpgm
L_w0_{L}:
    """)
    if el == 0:
        elect()
    if not early:
        a(f"s_waitcnt lgkmcnt(0)\ns_cmp_lg_u32 s{sTK}, {S-1}\ns_cbranch_scc1 L_nol1_{L}")
        fetch_others()
        if otouch == 2:
            a(f"global_load_ushort v{vT}, v{vA}, s[{sOUT}:{sOUT+1}]")
        a(f"L_nol1_{L}:")
    a("s_barrier")
    for i in range(1, NW):
        a(f"ds_read_b32 v{vS+i}, v{vZ2} offset:{LFL + 256*i}")
    for i in range(1, NW):
        a(f"ds_read_b128 {q4(vB,i)}, v{vN} offset:{LFO + 1024*i}")
    a(f"""
    v_min_u32 v{vM}, -2, v{vM}
    s_cmp_eq_u32 s{sTK}, {S-1}
    s_waitcnt lgkmcnt(0)
    v_add_f32 v{vS+1}, v{vS+1}, v{vS+2}
    v_add_f32 v{vL}, v{vL}, v{vS+3}
    """)
    for r in range(4):
        a(f"v_add_f32 v{vB+4+r}, v{vB+4+r}, v{vB+8+r}\nv_add_f32 v{vO+r}, v{vO+r}, v{vB+12+r}")
    for r in range(4):
        a(f"v_add_f32 v{vO+r}, v{vO+r}, v{vB+4+r}")
    a(f"v_add_f32 v{vL}, v{vL}, v{vS+1}")
    st(4)
    a(f"s_cbranch_scc1 L_fin_{L}")
    for r in (vO, vO + 1, vO + 2, vO + 3, vL):
        a(f"v_min_u32 v{r}, -2, v{r}")
    a(f"""
    global_store_dwordx4 v{vPO}, {q4(vO)}, s[{sWS}:{sWS+1}] sc1
    s_mov_b64 exec, 0x101
    global_store_dwordx2 v{vPM}, v[{vM}:{vL}], s[{sWS}:{sWS+1}] sc1
    {f"s_mov_b64 exec, -1" if stamp else ""}
    {f"s_branch L_notlast_{L}" if stamp else "s_endpgm"}
L_miss_{L}:
    """)
    fetch_others()
    if otouch == 2:
        a(f"global_load_ushort v{vT}, v{vA}, s[{sOUT}:{sOUT+1}]")
    a(f"""
L_fin_{L}:
    s_waitcnt vmcnt({8 if otouch == 2 else 7})
    v_max3_u32 v{vS}, v{vXM}, v{vXM+2}, v{vXM+4}
    v_max3_u32 v{vS}, v{vS}, v{vXM+6}, v{vXM+8}
    v_max3_u32 v{vS}, v{vS}, v{vXM+10}, v{vXM+12}
    v_cmp_eq_u32 vcc, -1, v{vS}
    v_max3_f32 v{vS+1}, v{vM}, v{vXM}, v{vXM+2}
    v_max3_f32 v{vS+1}, v{vS+1}, v{vXM+4}, v{vXM+6}
    v_max3_f32 v{vS+1}, v{vS+1}, v{vXM+8}, v{vXM+10}
    v_max_f32 v{vS+1}, v{vS+1}, v{vXM+12}
    s_cbranch_vccnz L_miss_{L}
    v_sub_f32 v{vS+2}, v{vM}, v{vS+1}
    """)
    for i in range(7):
        a(f"v_sub_f32 v{vXM+2*i}, v{vXM+2*i}, v{vS+1}")
    a(f"v_exp_f32 v{vS+2}, v{vS+2}")
    for i in range(7):
        a(f"v_exp_f32 v{vXM+2*i}, v{vXM+2*i}")
    a(f"v_mul_f32 v{vS+3}, v{vS+2}, v{vL}")
    for r in range(4):
        a(f"v_mul_f32 v{vB+r}, v{vS+2}, v{vO+r}")
    for i in range(7):
        a(f"v_fmac_f32 v{vS+3}, v{vXM+2*i}, v{vXM+2*i+1}")
    a(f"v_rcp_f32 v{vS+3}, v{vS+3}\ns_waitcnt vmcnt({1 if otouch == 2 else 0})")
    for i in range(7):
        for r in range(0, 4, 2 if pk else 1):
            if pk:
                a(f"v_pk_fma_f32 v[{vB+r}:{vB+r+1}], v[{vXM+2*i}:{vXM+2*i+1}], v[{vXO+4*i+r}:{vXO+4*i+r+1}], "
                  f"v[{vB+r}:{vB+r+1}] op_sel_hi:[0,1,1]")
            else:
                a(f"v_fmac_f32 v{vB+r}, v{vXM+2*i}, v{vXO+4*i+r}")
    for r in range(4):
        a(f"v_mul_f32 v{vB+r}, v{vB+r}, v{vS+3}")
    a(f"""
    v_cmp_u_f32 vcc, v{vB}, v{vB+1}
    v_cmp_u_f32 s[{sNAN}:{sNAN+1}], v{vB+2}, v{vB+3}
    v_cvt_pk_bf16_f32 v{vB}, v{vB}, v{vB+1}
    v_cvt_pk_bf16_f32 v{vB+2}, v{vB+2}, v{vB+3}
    s_nop 0
    s_or_b64 s[{sNAN}:{sNAN+1}], s[{sNAN}:{sNAN+1}], vcc
    s_cbranch_scc1 L_nan_{L}
L_store_{L}:
    {"s_endpgm" if fake == 1 else ""}
    {f"v_lshl_add_u32 v{vA}, v0, 3, s{sP9}" if fake == 2 else ""}
    {f"global_store_dwordx2 v{vA}, v[{vB+2}:{vB+3}], s[{sOUT}:{sOUT+1}] {oflags}" if fake == 2 else ""}
    {"s_endpgm" if fake == 2 else ""}
    global_store_short v{vA}, v{vB}, s[{sOUT}:{sOUT+1}] {oflags}
    global_store_short_d16_hi v{vA}, v{vB}, s[{sOUT}:{sOUT+1}] offset:16 {oflags}
    global_store_short v{vA}, v{vB+2}, s[{sOUT}:{sOUT+1}] offset:32 {oflags}
    global_store_short_d16_hi v{vA}, v{vB+2}, s[{sOUT}:{sOUT+1}] offset:48 {oflags}
    """)
    if stamp:
        a(f"L_notlast_{L}:")
        st(6)
        if diag:
            a(f"s_branch L_diag_{L}")
        else:
            a(f"""
            s_getreg_b32 s{sTMP}, hwreg(HW_REG_XCC_ID)
            s_waitcnt vmcnt(0) lgkmcnt(0)
            s_mov_b32 s{sT+10}, s{sT+8}
            v_mov_b32 v{vS}, s{sT}
            v_mov_b32 v{vS+1}, s{sT+12}
            v_mov_b32 v{vS+2}, s{sTMP}
            v_mov_b32 v{vS+3}, s{sTK}
L_hold_{L}:
            s_memrealtime s[{sPC}:{sPC+1}]
            s_waitcnt lgkmcnt(0)
            s_sub_u32 s{sPC}, s{sPC}, s{sT}
            s_cmp_lt_u32 s{sPC}, 9000
            s_cbranch_scc1 L_hold_{L}
            s_lshl_b32 s{sTMP}, s2, 4
            s_add_u32 s{sTMP}, s{sTMP}, {WS_STAMP}
            v_mov_b32 v{vT}, s{sTMP}
            {f"s_lshl_b32 s{sTM2}, s2, 8" if trace else ""}
            {f"s_add_u32 s{sTM2}, s{sTM2}, {WS_STAMP + 0x10000}" if trace else ""}
            {f"v_lshl_add_u32 v{vT2}, v0, 2, s{sTM2}" if trace else ""}
            {f"global_store_dword v{vT2}, v{vTR}, s[{sWS}:{sWS+1}]" if trace else ""}
            s_mov_b64 exec, 1
            global_store_dwordx4 v{vT}, {q4(vS)}, s[{sWS}:{sWS+1}]
            s_lshl_b32 s{sTMP}, s2, 5
            s_add_u32 s{sTMP}, s{sTMP}, {WS_STAMP + 0x1000}
            v_mov_b32 v{vT}, s{sTMP}
            """)
            for i in range(7):
                a(f"v_mov_b32 v{vT2}, s{sT+2*i}\nglobal_store_dword v{vT}, v{vT2}, s[{sWS}:{sWS+1}] offset:{4*i}")
    a("s_endpgm")
    a(f"L_nan_{L}:\nv_max3_u32 v{vS}, v{vXM+1}, v{vXM+3}, v{vXM+5}")
    rest = [vXM + 7, vXM + 9, vXM + 11, vXM + 13] + [vXO + i for i in range(28)]
    for i in range(0, len(rest), 2):
        a(f"v_max3_u32 v{vS}, v{vS}, v{rest[i]}, v{rest[i+1]}")
    a(f"""
    v_cmp_eq_u32 vcc, -1, v{vS}
    s_nop 4
    s_cbranch_vccnz L_miss_{L}
    s_branch L_store_{L}
    """)

    hQ, hK = RING0, RING0 + 16
    rnk_init = ""
    if ranked:
        rnk_init = (f"v_lshlrev_b32 v{vT}, 8, v0\nv_add_u32 v{vT}, {WS_RNK}, v{vT}\n"
                    f"global_store_dwordx4 v{vT}, {q4(vO)}, s[{sWS}:{sWS+1}] sc1\nv_add_u32 v{vT}, 0x4000, v{vT}\n"
                    f"global_store_dwordx4 v{vT}, {q4(vO)}, s[{sWS}:{sWS+1}] sc1")
    touch = ""
    if clrp:
        ptrs = [sWS] if clrp == 1 else [sWS, sKT, sVT, sMK]
        touch = "".join(f"s_load_dword s{sD+j}, s[{p}:{p+1}], 0\n" for j, p in enumerate(ptrs)) + "s_waitcnt lgkmcnt(0)"
        if clrp == 3:
            touch += f"\ns_load_dword s{sD}, s[{sWS}:{sWS+1}], 0x40000\ns_waitcnt lgkmcnt(0)"
    a(f"""
L_help_{L}:
    s_setprio 3
    v_lshl_add_u32 v{vA}, v{vT2}, 4, v{vA}
    v_and_b32 v0, 63, v0
    v_mov_b32 v{vM}, 0xff800000
    v_mov_b32 v{vO}, 0
    v_mov_b32 v{vO+1}, 0
    v_mov_b32 v{vO+2}, 0
    v_mov_b32 v{vO+3}, 0
    v_mov_b32 v{vB}, -1
    v_mov_b32 v{vB+1}, -1
    v_mov_b32 v{vB+2}, -1
    v_mov_b32 v{vB+3}, -1
    s_mov_b32 s{sC}, {f32(c_scale)}
    s_lshl_b32 s{sTMP}, s2, 10
    v_lshl_add_u32 v{vPO}, v0, 4, s{sTMP}
    s_lshl_b32 s{sTMP}, s{sPAIR}, 8
    s_lshl_b32 s{sTM2}, s{sSPL}, 4
    s_add_u32 s{sTM2}, s{sTM2}, s{sTMP}
    s_add_u32 s{sTM2}, s{sTM2}, {WS_ML}
    v_mov_b32 v{vPM}, s{sTM2}
    s_waitcnt lgkmcnt(0)
    {touch}
    global_store_dwordx4 v{vPO}, {q4(vB)}, s[{sWS}:{sWS+1}] sc1
    s_mov_b64 exec, 1
    global_store_dwordx4 v{vPM}, {q4(vB)}, s[{sWS}:{sWS+1}] sc1
    s_mov_b64 exec, -1
    s_cmp_lg_u32 s2, 0
    s_cbranch_scc1 L_noinit_{L}
    v_and_b32 v{vT}, 31, v0
    v_lshlrev_b32 v{vT}, 8, v{vT}
    v_add_u32 v{vT}, {WS_CTR}, v{vT}
    global_store_dword v{vT}, v{vO}, s[{sWS}:{sWS+1}] sc1
    {rnk_init}
    v_mov_b32 v{vN}, 1
    s_waitcnt vmcnt(0)
    global_store_dword v{vO}, v{vN}, s[{sDBG}:{sDBG+1}] sc1
L_noinit_{L}:
    s_and_b32 s{sTM2}, s{sPAIR}, 7
    s_cmp_lg_u32 s{sSPL}, s{sTM2}
    s_cbranch_scc1 L_notree_{L}
    s_lshr_b32 s{sTM2}, s{sPAIR}, 4
    s_lshl_b32 s{sTM2}, s{sTM2}, 1
    v_lshl_add_u32 v{vT}, v{vT2}, 4, s{sTMP}
    v_and_b32 v{vM}, 7, v0
    v_lshl_add_u32 v{vM}, v{vM}, 1, s{sTMP}
    v_lshl_add_u32 v{vM}, v{vT2}, 6, v{vM}
    v_mov_b32 v{vL}, s{sTM2}
    """)
    for i in range(4):
        a(f"global_load_dwordx4 {q4(hQ, i)}, v{vA}, s[{sQ}:{sQ+1}] offset:{64*i}")
    for i in range(4):
        a(f"global_load_dwordx4 {q4(hK, i)}, v{vT}, s[{sKT}:{sKT+1}] offset:{64*i}")
    for r in range(4):
        a(f"global_load_ushort v{vO+r}, v{vM}, s[{sVT}:{sVT+1}] offset:{16*r}")
    a(f"""
    global_load_ushort v{vN}, v{vL}, s[{sMK}:{sMK+1}]
    s_waitcnt vmcnt(0)
    v_mfma_f32_16x16x32_bf16 {q4(vS)}, {q4(hK,0)}, {q4(hQ,0)}, 0
    v_mfma_f32_16x16x32_bf16 {q4(vS)}, {q4(hK,1)}, {q4(hQ,1)}, {q4(vS)}
    v_mfma_f32_16x16x32_bf16 {q4(vS)}, {q4(hK,2)}, {q4(hQ,2)}, {q4(vS)}
    v_mfma_f32_16x16x32_bf16 {q4(vS)}, {q4(hK,3)}, {q4(hQ,3)}, {q4(vS)}
    v_lshlrev_b32 v{vO}, 16, v{vO}
    v_lshlrev_b32 v{vO+1}, 16, v{vO+1}
    v_lshlrev_b32 v{vO+2}, 16, v{vO+2}
    v_lshlrev_b32 v{vO+3}, 16, v{vO+3}
    v_lshlrev_b32 v{vN}, 16, v{vN}
    v_sub_f32 v{vN}, 1.0, v{vN}
    v_mul_f32 v{vN}, {f32(-1e9*math.log2(math.e))}, v{vN}
    s_nop 0
    v_fma_f32 v{vM}, v{vS}, s{sC}, v{vN}
L_notree_{L}:
    {f"v_mov_b32 v{vT}, s{sP9}" if otouch == 3 else ""}
    {f"global_load_dword v{vZ}, v{vT}, s[{sOUT}:{sOUT+1}]" if otouch == 3 else ""}
    v_lshlrev_b32 v{vT}, 2, v0
    v_lshlrev_b32 v{vT2}, 4, v0
    ds_write_b32 v{vT}, v{vM} offset:{LMX + 256*NW}
    ds_write_b128 v{vT2}, {q4(vO)} offset:{LTR}
    s_waitcnt vmcnt(0) lgkmcnt(0)
    """)
    if diag:
        a(f"s_endpgm\nL_diag_{L}:")
        diag_tail(a, L, sDBG, sT, sT + 2 * int(diag[-1]), 66, diag[:-1])
    a(f"L_end_{L}:\ns_endpgm")
    lds = SCL + NW * 128 * T
    return dict(label=label, body=a.text(), grid=NWG, block=64 * (NW + 1), lds=lds, nvgpr=nv, acc=nv,
                nsgpr=102 if table else 76 if stamp or ranked else 52)


if __name__ == "__main__":
    k = gen(NAME + "_kernel")
    sys.stdout.write(final_file(k))
```

```python
import re
import sys

import gen6
from gen1 import HEADER, NAME, kernel_text

DOC = """;
;
;
;
"""

NOTES = [
    (r"s_cmp_eq_u32 s34, 1\b", "xor map: wave and workgroup terms of the tile offset"),
    (r"v_and_b32 v10, 3, v0", "K lane offsets: row (lane >> 2) & 3, bytes 64 * (lane >> 4) + 16 * (lane & 3)"),
    (r"buffer_load_dwordx4 v\[64:67\]", "first ring of K tiles and the Q fragment"),
    (r"v_and_b32 v52, 15, v0", "V lane offsets: row lane >> 4, bytes 16 * (lane & 15)"),
    (r"v_and_b32 v10, 1, v0", "masks selecting bf16 element (lane & 7) of a B fragment"),
    (r"L_kloop:", "phase 1: 16 rounds of 4 K tiles; the last round refills the ring from V, at reduced depth at first"),
    (r"v_subrev_u32 v1, 8192, v1", "workgroup-wide maximum per head, in log2 units"),
    (r"v_sub_f32 v10, v36, v8", "wave 0: tree-token term"),
    (r"L_vloop:", "phase 2: 15 rounds of 4 V tiles with refill"),
    (r"ds_read_b128 v\[128:131\]", "last round: no refill"),
    (r"s_lshl_b32 s38, s2, 10", "exchange and output addresses"),
    (r"L_rdy:", "wave 0: arrival ticket, once the counters are known to be zeroed"),
    (r"s_cmp_eq_u32 s34, 0\b", "sum over the waves through LDS"),
    (r"L_w0:", "wave 0: the holder of ticket 7 starts reading the other partials"),
    (r"v_min_u32 v4, -2, v4", "publish; published words never equal the marker"),
    (r"L_miss:", "some word still held the marker: read again"),
    (r"L_fin:", "merge the eight partials and normalise"),
    (r"L_nan:", "a NaN result is either a word that has not arrived yet or a NaN in the data"),
    (r"L_help:", "helper wave: mark the slot, set up the counters (workgroup 0), score the tree token"),
]


def build(**kw):
    k = gen6.gen(NAME + "_kernel", **kw)
    body = re.sub(r"(L_\w+?)_" + NAME + "_kernel", r"\1", k["body"])
    out, todo = [], list(NOTES)
    for ln in body.split("\n"):
        if not ln.strip():
            continue
        ln = ln.rstrip()
        if todo and re.match(r"\s*" + todo[0][0], ln):
            out.append("    ; " + todo.pop(0)[1])
        out.append(ln)
    assert not todo, todo
    k["body"] = "\n".join(out) + "\n"
    return (HEADER + f"; @launch grid=({k['grid']},1,1) block=({k['block']},1,1) lds={k['lds']}\n" + DOC
            + '.amdgcn_target "amdgcn-amd-amdhsa--gfx950"\n' + kernel_text(k))


if __name__ == "__main__":
    sys.stdout.write(build(amap="l2", qpos=1))
```

```python
def diag_tail(a, label, sDBG, s_t0, s_x, tmp, mode, nwg_log2=8):
    now, mn, x = tmp, tmp + 2, tmp + 3
    mul = 1
    if mode.startswith("x"):
        if mode[1:] in ("mean", "max", "min"):
            mode, mul = mode[1:], 32
    rel = mn
    if mode.startswith("y"):
        mode, mul, rel = mode[1:], 32, s_t0

    def spin(tag, base, limit):
        a(f"""
L_dg{tag}_{label}:
        s_memrealtime s[{now}:{now+1}]
        s_waitcnt lgkmcnt(0)
        s_sub_u32 s{now}, s{now}, s{base}
        s_cmp_lt_u32 s{now}, {limit}
        s_cbranch_scc1 L_dg{tag}_{label}
        """)

    a("s_waitcnt vmcnt(0) lgkmcnt(0)")
    spin(0, s_t0, 11000)
    a(f"s_not_b32 s{mn}, s{s_t0}\ns_atomic_umax s{mn}, s[{sDBG}:{sDBG+1}], 240\ns_waitcnt lgkmcnt(0)")
    spin(1, s_t0, 13500)
    a(f"""
    s_mov_b32 s{mn}, 0
    s_atomic_add s{mn}, s[{sDBG}:{sDBG+1}], 240 glc
    s_waitcnt lgkmcnt(0)
    s_not_b32 s{mn}, s{mn}
    s_sub_u32 s{x}, s{s_x}, s{rel}
    s_mul_i32 s{x}, s{x}, {mul}
    s_min_u32 s{x}, s{x}, 20000
    """)
    if mode in ("xcc", "xrnd", "rot"):
        a(f"""
        s_getreg_b32 s{x}, hwreg(HW_REG_XCC_ID)
        s_sub_u32 s{x}, s{x}, s2
        s_and_b32 s{x}, s{x}, 7
        """)
        if mode == "rot":
            a(f"s_mul_i32 s{x}, s{x}, 1000\ns_atomic_add s{x}, s[{sDBG}:{sDBG+1}], 244")
        elif mode == "xcc":
            a(f"s_cselect_b32 s{x}, 5000, 0\ns_atomic_add s{x}, s[{sDBG}:{sDBG+1}], 244")
        else:
            a(f"s_cselect_b32 s{now}, 10000, 0\ns_mul_i32 s{x}, s{mn}, 0x9e3779b1\ns_lshr_b32 s{x}, s{x}, 20\n"
              f"s_max_u32 s{x}, s{x}, s{now}\ns_atomic_umax s{x}, s[{sDBG}:{sDBG+1}], 244")
    if mode == "max":
        a(f"s_atomic_umax s{x}, s[{sDBG}:{sDBG+1}], 244")
    elif mode == "min":
        a(f"s_not_b32 s{x}, s{x}\ns_atomic_umax s{x}, s[{sDBG}:{sDBG+1}], 244")
    elif mode == "mean":
        a(f"s_atomic_add s{x}, s[{sDBG}:{sDBG+1}], 244")
    a("s_waitcnt lgkmcnt(0)")
    spin(2, mn, 17500)
    a(f"s_mov_b32 s{x}, 0\ns_atomic_add s{x}, s[{sDBG}:{sDBG+1}], 244 glc\ns_waitcnt lgkmcnt(0)")
    if mode == "min":
        a(f"s_not_b32 s{x}, s{x}")
    if mode in ("mean", "xcc", "rot"):
        a(f"s_lshr_b32 s{x}, s{x}, {nwg_log2}")
    a(f"s_min_u32 s{x}, s{x}, 20000\ns_add_u32 s{x}, s{x}, 20000")
    spin(3, mn, f"s{x}")
```

```python
import math
import sys

from diag import diag_tail
from gen1 import Asm, NAME, bench_file, f32, final_file, kernel_text, meta
from gen4 import NAMES, parse_map

WS_CTR = 0x100000
WS_PRG = 0x110000
WS_STAMP = 0x1000000

MAPS = {
    "a1": "A=9^11^12^13^19 B=8^10^11^15^17^18^22 C=8^9^10^12^14^15^22 D=9^11 E=12^17^22 F=10^12^14^15^19^22 "
          "G=9^11^14^15 H=8^9^10^12^14^16^19 w0=10^12^17^20 w1=10^14^19 b=11 t0=9^16 t1=8^22 t2=9^13^21 "
          "t3=8^9^12^13^14^19^21 t4=10^12^14^19^22 r0=8^15 r1=11^13^18^21 r2=12 r3=9^10^17^18",
    "a2": "A=8^14^19 B=8^9^14^16^17^18^19^21^22 C=10^14 D=9^10^11^12^14^15^19^20 E=9^10^13^21 F=9^11 "
          "G=8^12^13^14^15^16^17^20^21 H=9^12^15 w0=9^12^13^14^15^19 w1=8^10^11^14^19 b=8^11 t0=8^9^15^16^21 "
          "t1=10^11^12^22 t2=15^16 t3=9^10^14^15^16^18^19^21^22 t4=8^9^12^13^20 r0=8^15 r1=9^16 r2=12^14^19 "
          "r3=8^10^11^14^15^19",
    "b1": "A=8^9^11^12^13^19^22 B=10^12^14^19^22 C=8^9^10^12^14^15^22 D=9^11^12 E=12^17^22 F=10^12^14^15^19^22 "
          "G=9^10^11^12^15^19^22 H=8^9^10^12^14^16^19 w0=10^12^17^20 w1=10^14^19 b=8^9^12^13^14^19^21 t0=9^16 "
          "t1=8^22 t2=9^13^21 t3=11 t4=8^10^11^15^17^18^22 r0=8^15 r1=9^11^18 r2=12 r3=9^10^17^18",
    "b2": "A=13^14 B=22 C=14 D=11^16^22 F=11^22 G=14 w0=11^14^18^19 w1=11^16^22 b=12 t0=13^21 t1=16^22 t2=14^19 "
          "t3=13^20^21 t4=11^17 r0=8 r1=9 r2=10 r3=15",
    "b3": "A=8^9^10^12^13^14 B=8^10^17 C=8^10^12^14 D=9^11 E=10 F=11 G=10^11^14^18 w0=14^19^22 w1=8^14^15^19^22 "
          "b=8 t0=12^22 t1=11^18 t2=8^10^14^19 t3=20 t4=9^18^21 r0=8^12^13 r1=13 r2=9^16 r3=18",
    "b4": "A=9^13^16^21 B=8^10^17 C=10^14 D=9^10 E=8^10 F=8^10^11^12^17^20 G=10^14 w0=13^20 w1=8^15^20 b=8 "
          "t0=8^10^13^16^21^22 t1=8^12^20 t2=10^14^19 t3=8^11^12^18^20 t4=8^13^22 r0=8^11^12^20 r1=9^16 r2=13 "
          "r3=8^10^22",
    "c1": "A=10^11^13^14^15^19 B=8^9^10^12^13^14^15^19^21^22 C=8^9^10^12^14^15^22 D=11^16 E=12^17^22 "
          "F=10^12^14^15^19^22 G=9^10^11^12^15^19^22 H=8^9^12^16 w0=10^12^17^20 w1=9^16 b=11 t0=10^14^19 t1=8^22 "
          "t2=8^9^13^15^21 t3=8^9^12^13^14^19^21 t4=8^10^11^15^17^18^22 r0=8^15 r1=9^10^11^12^17^18^20 r2=12 "
          "r3=9^10^17^18",
    "d1": "A=10^11^13^14^15^19 B=9^10^12^13^14^15^19^21 C=8^9^10^12^14^15^22 D=11^16 E=12^17^22 "
          "F=8^9^10^12^13^14^19^21^22 G=9^10^11^12^15^19^22 H=8^9^12^16 w0=10^12^17^20 w1=9^16 b=11 t0=10^14^19 "
          "t1=15^22 t2=8^9^13^15^21 t3=8^9^12^13^14^19^21 t4=8^10^11^15^17^18^22 r0=8^15 r1=9^10^11^12^17^18^20 "
          "r2=12 r3=9^10^17^18",
    "d2": "A=8^9^12^13^20 B=8^9^10^13^14^19^21^22 C=19 D=10^11^13^17^21^22 E=8^10^13^21^22 F=8^11^22 "
          "G=8^9^10^14^22 H=8^9^13^21^22 w0=8 w1=8^11^13^16^21 b=9^22 t0=9^10^11^13^17^21 t1=10^13^16^21 "
          "t2=10^14^19 t3=9^11^13^18^20^21 t4=8^9^12^13^20^21 r0=10^11^17 r1=8^12^13^16^21 r2=8^9^10^13^21^22 r3=8^15",
    "c3": "A=9^13^16^21 B=8^10^17 C=10^14 D=9^10 E=8^10 F=8^10^11^12^17^20 G=10^14 w0=8^10^22 w1=13^20 b=8 "
          "t0=8^10^13^16^21^22 t1=11 t2=10^14^19 t3=8^11^12^18^20 t4=11^12^13^18^20^22 r0=8^11^12^20 r1=13 r2=9^16 "
          "r3=8^15^20",
    "e1": "A=21 B=11^12^13^21 C=9^10^11^14 D=9 E=9^10^11^18 F=9^11^16 G=10^14 H=9^15^16^20 w0=9^12^15^16^20 "
          "w1=13^18^21 b=8^12^20 t0=9^13^21 t1=8^22 t2=8^9^13^21 t3=8^10^12^14^19^20 t4=10^17 r0=9^11^18 r1=11^13^21 "
          "r2=8^9^10^12^13^15^20^21 r3=9^16",
    "e2": "A=13^16 B=8^10^11^12^14^19 C=10^14 D=8^9^12^20 E=10 F=11 G=10^14^18 H=8^11^12 w0=9^13^21 w1=11 "
          "b=10^14^19 t0=8^15 t1=8^10^14^19^22 t2=8^12^20 t3=18 t4=10^17 r0=10 r1=8^9^16^21 r2=9^12^14^19^20^22 r3=9^16",
    "e3": "A=9^13 B=8^13^21 C=10^14 D=9 E=10^12 F=11 G=10^14 H=8^9^12 w0=8 w1=9^16 b=8^12^20 t0=9^13^21 "
          "t1=9^10^14^16^19 t2=11^18 t3=10^17 t4=8^22 r0=11 r1=12 r2=8^11^15 r3=10",
    "f1": "A=9^13 B=8^13^21 C=14 D=9 G=14 H=8^9 w0=8 w1=9^16 b=8^20 t0=9^13^21 t1=9^14^16^19 t2=18 t3=17 t4=8^22 "
          "r0=11 r1=12 r2=15 r3=10",
    "f2": "A=9^13 B=8^13^21 C=14 D=9 G=14 H=8^9 w0=8 w1=9^16 b=8^20 t0=9^13^21 t1=9^14^16^19 t2=18 t3=17 t4=8^22 "
          "r0=10 r1=11 r2=12 r3=15",
    "f3": "A=9^13 B=13^21 C=14 D=9 G=14 H=9 w0=8 w1=9^16 b=20 t0=9^13^21 t1=14^19 t2=18 t3=17 t4=22 "
          "r0=10 r1=11 r2=12 r3=15",
    "f4": "A=9^13 B=9 C=14 D=9 G=14 H=9 w0=8 w1=9^16 b=20 t0=9^13^21 t1=14^19 t2=18 t3=17 t4=22 "
          "r0=10 r1=11 r2=12 r3=15",
    "f5": "A=9^13 B=13^21 C=14 G=14 w0=8 w1=9^16 b=20 t0=9^13^21 t1=14^19 t2=18 t3=17 t4=22 "
          "r0=10 r1=11 r2=12 r3=15",
    "f6": "A=9^13 B=13^21 C=14 D=9 G=14 H=9 w0=15 w1=9^16 b=20 t0=9^13^21 t1=14^19 t2=18 t3=17 t4=22 "
          "r0=8 r1=10 r2=11 r3=12",
    "f7": "A=9^13 B=13^21 C=14 D=9 G=14 H=9 w0=12 w1=9^16 b=20 t0=9^13^21 t1=14^19 t2=18 t3=17 t4=22 "
          "r0=8 r1=10 r2=11 r3=15",
    "g1": "A=9^10^13^14 B=8^13^21 C=10^14 D=9 E=10^12 F=11 G=10^14 H=8^9^12 w0=8 w1=9^16 b=8^12^20 t0=9^13^21 "
          "t1=9^10^14^16^19 t2=11^18 t3=10^17 t4=8^22 r0=10 r1=12 r2=8^11^15 r3=11",
    "g2": "A=9^13^14^18 B=13^21 C=14^15 D=9 G=14 H=9^22 w0=11^12^14^19 w1=9^16 b=22 t0=9^13^21 t1=11^14^19 "
          "t2=9^16^18 t3=8^17 t4=9^13^20^21 r0=11 r1=8^9^10^16 r2=8 r3=15",
    "h1": "A=9^13 B=11^13^15^21 C=10^14 D=9^10^17 E=10^12 F=11 G=10^14 H=8^9^12 w0=9^16 w1=8 b=8^12^20 t0=9^13^21 "
          "t1=9^10^14^16^19 t2=8^22 t3=11^17 t4=11^18 r0=11 r1=12 r2=8^11^15 r3=10^11",
    "j1": "A=9^12^13 B=8^13^21 C=10^14 D=13^21 E=10^12 F=11 G=10^14 H=8^9^12 w0=8 w1=9^16 b=9^10^14^16^19 t0=9^13^21 "
          "t1=8^22 t2=11^18 t3=10^17 t4=8^20 r0=11 r1=12 r2=8^11^15 r3=9^13^14",
    "j2": "A=10^13^14^16^19 B=8^13^21 C=10^14 D=9 E=10^12 F=11 G=10^14 H=8^9^12 w0=8^10^17 w1=9^16 b=8^22 t0=9^13^21 "
          "t1=9^10^14^16^19 t2=10^17 t3=8^11^15^18 t4=8^12^20 r0=8^15 r1=12 r2=10^11^14 r3=9^10^13",
    "j3": "A=9^13 B=8^13^21 C=10^14 D=9 E=10^12 F=11 G=10^14 H=8^9^12 w0=12^20 w1=11 b=8^12^20 t0=8^9^11^13^15^21 "
          "t1=8^22 t2=9^10^14^16^19 t3=10^17 t4=11^18 r0=9^16 r1=12 r2=8^11^15 r3=9^10^13",
    "l1": "A=9^12^13 B=8^13^21 C=10^14 D=13^21 E=10^12 F=11^12 G=10^14 H=8^9^12 w0=8 w1=9^16 b=10^13^16^19 "
          "t0=9^13^21 t1=8^9^10^14^16^19^22 t2=8^20 t3=10^17 t4=11^18 r0=9^13^14 r1=12 r2=8^11^12^15 r3=11",
    "o1": "A=8^9^12^13^20 B=12^13^20^21 C=10^14 D=13^21 E=8^9^12^14^16^19^22 F=11^12 G=13^14^16^19 H=8^9^12 w0=8 "
          "w1=8^9^16 b=8^9^10^13^15^19 t0=9^13^21 t1=8^9^10^14^16^19^22 t2=8^20 t3=9^11^13^18^21 t4=10^17 "
          "r0=8^10^13^16^19^22 r1=12 r2=8^11^15 r3=8^9^15^16",
    "n3": "A=8^9^12^13^20 B=8^12^13^21 C=8^9^16^19^22 D=13^21 E=8^9^12^14^16^19^22 F=11^12 G=13^14^16^19 H=8^9^12 "
          "w0=8 w1=8^9^16 b=10^13^16^19 t0=9^13^21 t1=8^9^10^14^16^19^22 t2=8^20 t3=10^17 t4=9^11^13^18^21 "
          "r0=9^13^14 r1=12 r2=8^11^15 r3=9^11^16",
    "l2": "A=9^12^13 B=8^13^21 C=10^14 D=13^21 E=10^12 F=11^12 G=10^14 H=8^9^12 w0=8 w1=8^9^16 b=10^13^16^19 "
          "t0=9^13^21 t1=8^9^10^14^16^19^22 t2=8^20 t3=10^17 t4=11^18 r0=9^13^14 r1=12 r2=8^11^12^15 r3=11",
    "oB": "A=8^9^12^13^20 B=8^13^21 C=10^14 D=13^21 E=8^9^12^14^16^19^22 F=11^12 G=13^14^16^19 H=8^9^12 w0=8 "
          "w1=8^9^16 b=8^9^10^13^15^19 t0=9^13^21 t1=8^9^10^14^16^19^22 t2=8^20 t3=9^11^13^18^21 t4=10^17 "
          "r0=8^10^13^16^19^22 r1=12 r2=8^11^15 r3=8^9^15^16",
    "p1": "A=13 B=22 C=14 G=14 w0=16 w1=15 b=12 t0=17 t1=18 t2=14^19 t3=20 t4=13^21",
    "p2": "A=12 B=22 C=14 G=14 H=12 w0=16 w1=15 b=13 t0=17 t1=18 t2=14^19 t3=12^20 t4=21",
}


def gen(label, NB=4, amap="a1", flags="nt", stamp=0, sbar=2, diag="", cstr=256, table=0, mid=0, prio=1, trace=0, wv=-1, fine=0, tlb=0, thr=-1, ctl=0, PG=32, NL=16, lag=0, rd=1, pxor=2, pfl="", r0=4, zone=0, skew=0, sx=2, sy=2, sy1=0, sy3=0, oflags="", clr=0):
    NW, S, T = 4, 8, 64
    NP = NW + 1
    NWG = 32 * S
    if diag:
        stamp = 1
    assert T % NB == 0 and NB % 2 == 0
    W = parse_map(MAPS.get(amap, amap))
    TB = ["b", "t0", "t1", "t2", "t3", "t4"]
    sW = 76
    rows = [W["r%d" % j] for j in range(4)]
    plain = all(v & (v - 1) == 0 for v in rows) and all(W[n] & sum(rows) == 0 for n in NAMES[:16])
    gx = table or not (plain and W["r0"] + W["r1"] < 4096)

    def wt(n):
        if table:
            i = NAMES.index(n)
            return f"s{sW + i + (1 if i >= 16 else 0)}"
        return f"{W[n]:#x}"

    c_scale = (128 ** -0.5) * math.log2(math.e)

    vLA = 1
    vZ, vZ2 = 2, 3
    vO = 4
    vM, vL = 8, 9
    vT, vT2, vA, vN = 10, 11, 12, 13
    vKO, vVO = 14, 15
    CB = 16
    vS = 16
    vQ = 24
    vMASK = 28
    vB = 32
    vLN = 48
    vLV = 52
    vAD = 56
    RING0 = 64
    assert CB + NP * 6 <= RING0 and CB + S * 6 <= RING0
    nv = RING0 + 16 * NB

    def ring(b, i):
        o = RING0 + 16 * b + 4 * i
        return "v[%d:%d]" % (o, o + 3)

    def q4(base, i=0):
        return "v[%d:%d]" % (base + 4 * i, base + 4 * i + 3)

    sQ, sK, sV, sKT, sVT, sMK, sOUT, sDBG, sWS = 4, 6, 8, 10, 12, 14, 16, 18, 20
    sEX = 22
    sD = 24
    sPAIR, sSPL, sWAVE, sOFF, sC, sIT, sTMP, sP9 = 32, 33, 34, 35, 36, 37, 38, 39
    sTI, sTK, sFLAG, sTM2, sWB = 40, 42, 44, 45, 47
    sTHR = 46
    sSK = 31
    sCTL, sJ, sPV, sPUB, sMINE, sPART, sEN = 41, 43, 28, 29, 30, 74, 3
    PRD = 192 if table else 128
    sPC = 48
    sCTR = 50
    sT = 52
    L = label
    SCL = NP * 1536
    a = Asm()

    def st(i):
        if stamp:
            a(f"s_memrealtime s[{sT+2*i}:{sT+2*i+1}]")

    def xor_bits(dst, init, src, names):
        cur = init
        for j, n in enumerate(names):
            if not table and W[n] == 0:
                continue
            a(f"s_bitcmp1_b32 s{src}, {j}")
            if cur is None:
                a(f"s_cselect_b32 s{dst}, {wt(n)}, 0")
            else:
                a(f"s_cselect_b32 s{sTMP}, {wt(n)}, 0\ns_xor_b32 s{dst}, s{cur}, s{sTMP}")
            cur = dst

    lgNB = NB.bit_length() - 1

    def group_off():
        xor_bits(sOFF, sWB, sTI, TB[lgNB:])
        if table:
            a(f"s_and_b32 s{sOFF}, s{sOFF}, 0x7fff00")
        a(f"s_add_u32 s{sTI}, s{sTI}, 1")

    def addr(b):
        for j in range(lgNB):
            if b and (b ^ (b - 1)) >> j & 1:
                a(f"s_xor_b32 s{sOFF}, s{sOFF}, {wt(TB[j])}")
                if skew >= 2 and j == 0:
                    a(f"s_xor_b32 s{sOFF}, s{sOFF}, s{sSK}")
        if gx:
            for i in range(4):
                a(f"v_xor_b32 v{vAD + 4*(b & 1) + i}, s{sOFF}, v{vLN + i}")

    def issue(b, paced=True):
        if paced and wv >= 0:
            a(f"s_waitcnt vmcnt({wv})")
        if paced and thr >= 0:
            issue.n += 1
            a(f"s_cmp_eq_u32 s{sTHR}, 0\ns_cbranch_scc1 L_nt{issue.n}_{L}\ns_waitcnt vmcnt({thr})\nL_nt{issue.n}_{L}:")
        for i in range(4):
            if paced and fine:
                a(f"s_waitcnt vmcnt({fine - 1})")
            if gx:
                a(f"buffer_load_dwordx4 {ring(b,i)}, v{vAD + 4*(b & 1) + i}, s[{sD}:{sD+3}], 0 offen {flags}")
            else:
                o = (i & 1) * W["r0"] + (i >> 1) * W["r1"]
                a(f"buffer_load_dwordx4 {ring(b,i)}, v{vLN}, s[{sD}:{sD+3}], s{sOFF} offen offset:{o} {flags}")

    issue.n = 0

    def lane_rows(dst, bit):
        if not gx and W["r3"] == W["r2"] << 1:
            a(f"v_bfe_u32 v{vZ}, v0, {bit}, 2\nv_lshl_add_u32 v{dst}, v{vZ}, {W['r2'].bit_length() - 1}, v{dst}")
        else:
            for j in range(2):
                a(f"v_bfe_i32 v{vZ}, v0, {bit + j}, 1\nv_and_b32 v{vZ}, {wt('r%d' % (2 + j))}, v{vZ}\n"
                  f"v_xor_b32 v{dst}, v{dst}, v{vZ}")
        if gx:
            a(f"v_xor_b32 v{dst+1}, {wt('r0')}, v{dst}\nv_xor_b32 v{dst+2}, {wt('r1')}, v{dst}\n"
              f"v_xor_b32 v{dst+3}, {wt('r1')}, v{dst+1}")

    a(f"""
    s_cmp_ge_u32 s2, {NWG}
    s_cbranch_scc1 L_end_{L}
    s_load_dwordx16 s[4:19], s[0:1], 0
    s_load_dwordx2 s[20:21], s[0:1], 64
    """)
    st(0)
    a(f"""
    v_lshrrev_b32 v{vN}, 6, v0
    s_and_b32 s{sSPL}, s2, 7
    s_lshr_b32 s{sPAIR}, s2, 3
    v_readfirstlane_b32 s{sWAVE}, v{vN}
    v_bfe_u32 v{vT2}, v0, 4, 2
    s_lshl_b32 s{sP9}, s{sPAIR}, 9
    v_bfe_u32 v{vA}, v0, 3, 1
    v_lshl_add_u32 v{vA}, v{vA}, 8, s{sP9}
    s_cmp_eq_u32 s{sWAVE}, {NW}
    s_cbranch_scc1 L_help_{L}
    """)
    if table:
        a(f"""
        s_waitcnt lgkmcnt(0)
        s_load_dwordx16 s[{sW}:{sW+15}], s[{sDBG}:{sDBG+1}], 64
        s_load_dwordx8 s[{sW+16}:{sW+23}], s[{sDBG}:{sDBG+1}], 128
        s_waitcnt lgkmcnt(0)
        """)
    xor_bits(sWB, None, sWAVE, ["w0", "w1"])
    xor_bits(sWB, sWB, 2, list("ABCDEFGH"))
    def skw(mask, word):
        if table and skew == 3:
            return f"s{sW + word}"
        if table:
            return wt("B")
        v = 0
        for j, n in enumerate("ABC"):
            if mask >> j & 1:
                v ^= W[n]
        return f"{v:#x}"

    if skew:
        a(f"s_cmp_eq_u32 s{sWAVE}, 3\ns_cselect_b32 s{sTMP}, {skw(sx, 16)}, 0\ns_xor_b32 s{sWB}, s{sWB}, s{sTMP}")
    if skew >= 2:
        a(f"s_cmp_eq_u32 s{sWAVE}, 2\ns_cselect_b32 s{sSK}, {skw(sy, 21)}, 0")
        for wv_, mask, word in ((1, sy1, 22), (3, sy3, 23)):
            if (table and skew == 3) or mask:
                a(f"s_cmp_eq_u32 s{sWAVE}, {wv_}\ns_cselect_b32 s{sSK}, {skw(mask, word)}, s{sSK}")
    if table:
        a(f"s_and_b32 s{sWB}, s{sWB}, 0x7fff00")
    a(f"""
    v_and_b32 v{vT}, 3, v0
    v_lshlrev_b32 v{vT}, 4, v{vT}
    v_lshl_add_u32 v{vLN}, v{vT2}, 6, v{vT}
    v_add_u32 v{vA}, v{vA}, v{vLN}
    """)
    lane_rows(vLN, 2)
    a(f"""
    s_mov_b32 s{sOFF}, s{sWB}
    s_lshl_b32 s{sTMP}, s{sPAIR}, 23
    s_mov_b32 s{sD+2}, 0x800000
    s_mov_b32 s{sD+3}, 0x20000
    """)
    addr(0)
    a(f"""
    s_waitcnt lgkmcnt(0)
    s_add_u32 s{sD}, s{sK}, s{sTMP}
    s_addc_u32 s{sD+1}, s{sK+1}, 0
    """)
    st(1)
    a(f"global_load_dwordx4 {q4(vQ)}, v{vA}, s[{sQ}:{sQ+1}]")
    issue(0, False)
    a(f"s_add_u32 s{sV}, s{sV}, s{sTMP}\ns_addc_u32 s{sV+1}, s{sV+1}, 0")
    for b in range(1, NB):
        addr(b)
        issue(b, False)
    a(f"v_and_b32 v{vLV}, 15, v0\nv_lshlrev_b32 v{vLV}, 4, v{vLV}")
    lane_rows(vLV, 4)
    a(f"""
    s_mov_b32 s{sTI}, 1
    {"s_mov_b32 s%d, 0" % sTHR if ctl or zone else "s_and_b32 s%d, s2, 2" % sTHR}
    s_mov_b32 s{sC}, {f32(c_scale)}
    s_mov_b32 s{sEX}, 0x01010101
    s_mov_b32 s{sEX+1}, 0x01010101
    s_lshl_b32 s{sTMP}, s{sWAVE}, 13
    s_add_u32 s{sTMP}, s{sTMP}, {SCL}
    v_bfe_u32 v{vLA}, v0, 3, 1
    v_lshl_add_u32 v{vLA}, v{vLA}, 6, s{sTMP}
    v_lshl_add_u32 v{vLA}, v{vT2}, 4, v{vLA}
    v_and_b32 v0, 63, v0
    v_mov_b32 v{vM}, 0xff800000
    v_mov_b32 v{vL}, 0
    v_mov_b32 v{vO}, 0
    v_mov_b32 v{vO+1}, 0
    v_mov_b32 v{vO+2}, 0
    v_mov_b32 v{vO+3}, 0
    v_and_b32 v{vT}, 1, v0
    v_lshlrev_b32 v{vT}, 4, v{vT}
    v_mov_b32 v{vA}, 0xffff
    v_lshlrev_b32 v{vA}, v{vT}, v{vA}
    v_bfe_u32 v{vT}, v0, 1, 2
    """)
    for r in range(4):
        a(f"v_cmp_eq_u32 vcc, {r}, v{vT}\ns_nop 1\nv_cndmask_b32 v{vMASK+r}, 0, v{vA}, vcc")
    steady = 4 * (NB - 1)
    if stamp and not mid:
        a(f"s_waitcnt vmcnt({steady})")
        st(2)

    def ktile(b):
        addr(b)
        a(f"s_waitcnt vmcnt({steady})")
        for i in range(4):
            a(f"v_mfma_f32_16x16x32_bf16 {q4(vB,i)}, {ring(b,i)}, {q4(vQ)}, 0")
        issue(b)
        a("s_nop 0")
        sq = vS + 4 * (b & 1)
        for i in range(4):
            d = vB + 4 * i
            a(f"v_add_f32_dpp v{sq+i}, v{d+1}, v{d} quad_perm:[1,1,1,1] row_mask:0xf bank_mask:0xf")
            a(f"v_add_f32_dpp v{sq+i}, v{d+2}, v{sq+i} quad_perm:[2,2,2,2] row_mask:0xf bank_mask:0xf")
            a(f"v_add_f32_dpp v{sq+i}, v{d+3}, v{sq+i} quad_perm:[3,3,3,3] row_mask:0xf bank_mask:0xf")
        a(f"""
        v_max3_f32 v{vM}, v{vM}, v{sq}, v{sq+1}
        v_max3_f32 v{vM}, v{vM}, v{sq+2}, v{sq+3}
        s_mov_b64 exec, s[{sEX}:{sEX+1}]
        ds_write_b128 v{vLA}, {q4(sq)} offset:{128*b}
        s_mov_b64 exec, -1
        """)

    def vtile(b, left=0):
        sq = vS + 4 * (b & 1)
        nq = vS + 4 * ((b + 1) & 1)
        a("s_waitcnt lgkmcnt(0)")
        if left != 1:
            a(f"ds_read_b128 {q4(nq)}, v{vLA} offset:{128*(b+1)}")
        for r in range(4):
            a(f"v_fma_f32 v{sq+r}, v{sq+r}, s{sC}, -v{vM}")
        for r in range(4):
            a(f"v_exp_f32 v{sq+r}, v{sq+r}")
        if not left:
            addr(b)
        a("s_nop 0")
        for r in range(4):
            a(f"v_add_f32 v{vL}, v{vL}, v{sq+r}")
        for r in range(4):
            a(f"v_cvt_pk_bf16_f32 v{sq+r}, v{sq+r}, v{sq+r}")
        for r in range(4):
            for j in range(4):
                a(f"v_and_b32 v{vB+4*r+j}, v{vMASK+j}, v{sq+r}")
        a(f"s_waitcnt vmcnt({4*(left-1) if left else steady})\ns_nop 0")
        for r in range(4):
            a(f"v_mfma_f32_16x16x32_bf16 {q4(vO)}, {ring(b,r)}, {q4(vB,r)}, {q4(vO)}")
        if not left:
            issue(b)

    NR = T // NB
    if ctl:
        lgp = PG.bit_length() - 1
        a(f"""
        s_mov_b32 s{sCTL}, 0
        s_mov_b32 s{sJ}, 0
        s_mov_b32 s{sPV}, 0
        s_and_b32 s{sPUB}, s{sPAIR}, {PG-1}
        s_lshr_b32 s{sTMP}, s{sPAIR}, {lgp}
        s_lshl_b32 s{sTMP}, s{sTMP}, 3
        s_add_u32 s{sTMP}, s{sTMP}, s{sSPL}
        s_xor_b32 s{sTM2}, s{sTMP}, {pxor}
        s_lshl_b32 s{sEN}, s{sTM2}, 2
        s_add_u32 s{sEN}, s{sEN}, {PRD}
        s_mul_i32 s{sTMP}, s{sTMP}, {NL*128}
        s_mul_i32 s{sTM2}, s{sTM2}, {NL*128}
        s_add_u32 s{sTMP}, s{sTMP}, {WS_PRG}
        s_add_u32 s{sTM2}, s{sTM2}, {WS_PRG}
        s_add_u32 s{sMINE}, s{sWS}, s{sTMP}
        s_addc_u32 s{sMINE+1}, s{sWS+1}, 0
        s_add_u32 s{sPART}, s{sWS}, s{sTM2}
        s_addc_u32 s{sPART+1}, s{sWS+1}, 0
        """)

    def control(b):
        if not ctl:
            return
        control.n += 1
        n = control.n
        body = []
        if (b - rd - 1) % ctl == 0:
            body.append(f"s_waitcnt lgkmcnt(0)\ns_add_u32 s{sTMP}, s{sPV}, {lag}\ns_cmp_lt_u32 s{sTMP}, s{sTK}\n"
                        f"s_cselect_b32 s{sTHR}, s{sEN}, 0")
        if b % ctl == 0:
            body.append(f"s_add_u32 s{sJ}, s{sJ}, 1\ns_cmp_lg_u32 s{sPUB}, 0\ns_cbranch_scc1 L_np{n}_{L}\n"
                        f"s_and_b32 s{sTMP}, s{sJ}, {NL-1}\ns_lshl_b32 s{sTMP}, s{sTMP}, 7\n"
                        f"s_atomic_umax s{sJ}, s[{sMINE}:{sMINE+1}], s{sTMP}\nL_np{n}_{L}:")
        if (b - rd) % ctl == 0:
            body.append(f"s_and_b32 s{sTMP}, s{sJ}, {NL-1}\ns_lshl_b32 s{sTMP}, s{sTMP}, 7\ns_mov_b32 s{sTK}, s{sJ}\n"
                        f"s_load_dword s{sPV}, s[{sPART}:{sPART+1}], s{sTMP} {pfl}")
        if body:
            a(f"s_cmp_eq_u32 s{sCTL}, 0\ns_cbranch_scc1 L_nc{n}_{L}\n" + "\n".join(body) + f"\nL_nc{n}_{L}:")

    control.n = 0
    sTS = 72

    def tr():
        if trace:
            a(f"""
            s_waitcnt lgkmcnt(0)
            v_writelane_b32 v{vZ2}, s{sTS}, m0
            s_add_u32 m0, m0, 1
            s_memrealtime s[{sTS}:{sTS+1}]
            """)

    if trace:
        a(f"s_waitcnt lgkmcnt(0)\ns_mov_b32 s{sTS}, s{sT}\ns_mov_b32 m0, 0\nv_mov_b32 v{vZ2}, 0")
    a(f"""
    s_mov_b32 s{sIT}, 0
L_kloop_{L}:
    s_cmp_lg_u32 s{sIT}, {NR-1}
    s_cbranch_scc1 L_kgo_{L}
    s_mov_b32 s{sD}, s{sV}
    s_mov_b32 s{sD+1}, s{sV+1}
    s_mov_b32 s{sTI}, 0
    {"s_mov_b32 s%d, 1" % sTHR if zone else ""}
    s_load_dword s{sFLAG}, s[{sDBG}:{sDBG+1}], 0
    """)
    for i in range(4 if gx else 1):
        a(f"v_mov_b32 v{vLN+i}, v{vLV+i}")
    a(f"L_kgo_{L}:")
    if ctl:
        a(f"""
        s_cmp_lg_u32 s{sIT}, {r0}
        s_cbranch_scc1 L_kc2_{L}
        s_cmp_lg_u32 s{sWAVE}, 0
        s_cbranch_scc1 L_kc2_{L}
        s_load_dword s{sEN}, s[{sDBG}:{sDBG+1}], s{sEN}
        s_mov_b32 s{sTK}, 0
        s_mov_b32 s{sCTL}, 1
L_kc2_{L}:
        """)
    tr()
    group_off()
    for b in range(NB):
        if sbar and b % sbar == 0:
            a(f"s_cmp_lt_u32 s{sIT}, {12 // NB}\ns_cbranch_scc1 L_knb{b}_{L}\ns_barrier\nL_knb{b}_{L}:")
        control(b)
        ktile(b)
    a(f"""
    v_add_u32 v{vLA}, {128*NB}, v{vLA}
    s_add_u32 s{sIT}, s{sIT}, 1
    s_cmp_lt_u32 s{sIT}, {NR}
    s_cbranch_scc1 L_kloop_{L}
    v_subrev_u32 v{vLA}, {128*T}, v{vLA}
    v_mov_b32 v{vT2}, v{vM}
    s_waitcnt lgkmcnt(0)
    ds_read_b128 {q4(vS)}, v{vLA}
    v_permlane16_swap_b32 v{vM}, v{vT2}
    v_max_f32 v{vM}, v{vM}, v{vT2}
    v_mov_b32 v{vT2}, v{vM}
    s_nop 1
    v_permlane32_swap_b32 v{vM}, v{vT2}
    v_max_f32 v{vT2}, v{vM}, v{vT2}
    v_mul_f32 v{vT2}, s{sC}, v{vT2}
    s_nop 1
    v_mov_b32_dpp v{vM}, v{vT2} row_newbcast:0 row_mask:0xf bank_mask:0x3
    v_mov_b32_dpp v{vM}, v{vT2} row_newbcast:8 row_mask:0xf bank_mask:0xc
    s_mov_b32 s{sIT}, 1
    {"" if ctl or zone else "s_xor_b32 s%d, s%d, 2" % (sTHR, sTHR)}
    """)
    if mid:
        st(2)
    a(f"L_vloop_{L}:")
    if zone:
        a(f"s_cmp_lt_u32 s{sIT}, {zone}\ns_cselect_b32 s{sTHR}, 1, 0")
    tr()
    group_off()
    for b in range(NB):
        if sbar and b % sbar == 0:
            a("s_barrier")
        control(b)
        vtile(b)
    a(f"""
    v_add_u32 v{vLA}, {128*NB}, v{vLA}
    s_add_u32 s{sIT}, s{sIT}, 1
    s_cmp_lt_u32 s{sIT}, {NR}
    s_cbranch_scc1 L_vloop_{L}
    """)
    tr()
    for b in range(NB):
        vtile(b, NB - b)
    tr()
    tr()
    a(f"s_nop 1\ns_branch L_done_{L}")

    hQ, hK = RING0, RING0 + 16
    clr_code = ""
    if clr:
        clr_code = (f"s_lshl_b32 s{sTMP}, s2, 11\nv_lshl_add_u32 v{vT}, v0, 4, s{sTMP}\nv_lshl_add_u32 v{vZ}, v0, 3, s{sTMP}\n"
                    f"global_store_dwordx4 v{vT}, {q4(vO)}, s[{sWS}:{sWS+1}] sc1\n")
        if clr == 1:
            clr_code += f"global_store_dwordx2 v{vZ}, v[{vO}:{vO+1}], s[{sWS}:{sWS+1}] offset:1024 sc1\n"
        clr_code += "s_waitcnt vmcnt(0)"
    prg_init = ""
    if ctl:
        assert (32 // PG) * 8 * 4 + PRD <= 256
        prg_init = (f"s_and_b32 s{sTMP}, s{sPAIR}, {PG-1}\ns_cmp_lg_u32 s{sTMP}, 0\ns_cbranch_scc1 L_nopi_{L}\n"
                    f"s_lshr_b32 s{sTMP}, s{sPAIR}, {PG.bit_length()-1}\ns_lshl_b32 s{sTMP}, s{sTMP}, 3\n"
                    f"s_add_u32 s{sTMP}, s{sTMP}, s{sSPL}\ns_lshl_b32 s{sTM2}, s{sTMP}, 2\n"
                    f"s_mul_i32 s{sTMP}, s{sTMP}, {NL*128}\ns_add_u32 s{sTMP}, s{sTMP}, {WS_PRG}\n"
                    f"v_lshl_add_u32 v{vT}, v0, 4, s{sTMP}\n")
        for i in range(NL // 8):
            if i and i % 4 == 0:
                prg_init += f"v_add_u32 v{vT}, 0x1000, v{vT}\n"
            prg_init += f"global_store_dwordx4 v{vT}, {q4(vO)}, s[{sWS}:{sWS+1}] offset:{1024*(i % 4)} sc1\n"
        prg_init += (f"v_mov_b32 v{vT}, s{sTM2}\nv_mov_b32 v{vN}, 1\ns_waitcnt vmcnt(0)\n"
                     f"global_store_dword v{vT}, v{vN}, s[{sDBG}:{sDBG+1}] offset:{PRD} sc1\nL_nopi_{L}:")
    tlb_code = ""
    if tlb >= 2:
        tlb_code = f"s_lshl_b32 s{sTMP}, s{sPAIR}, 23\ns_lshl_b32 s{sTM2}, s2, 8\ns_add_u32 s{sTMP}, s{sTMP}, s{sTM2}\n"
        for base in ([sV] if tlb == 2 else [sK, sV]):
            tlb_code += f"s_add_u32 s{sD}, s{base}, s{sTMP}\ns_addc_u32 s{sD+1}, s{base+1}, 0\n"
            for j in range(4):
                tlb_code += f"s_load_dword s{sFLAG}, s[{sD}:{sD+1}], 0\n"
                if j < 3:
                    tlb_code += f"s_add_u32 s{sD}, s{sD}, 0x200000\ns_addc_u32 s{sD+1}, s{sD+1}, 0\n"
    elif tlb:
        tlb_code = (f"s_lshl_b32 s{sTMP}, s{sPAIR}, 23\nv_and_b32 v{vT}, 3, v0\nv_lshl_add_u32 v{vT}, v{vT}, 21, s{sTMP}\n"
                    f"s_lshl_b32 s{sTMP}, s2, 8\nv_add_u32 v{vT}, s{sTMP}, v{vT}\n"
                    f"global_load_dword v{vZ}, v{vT}, s[{sV}:{sV+1}] nt")
    a(f"""
L_help_{L}:
    {"s_setprio 3" if prio else ""}
    v_lshl_add_u32 v{vA}, v{vT2}, 4, v{vA}
    v_and_b32 v0, 63, v0
    v_mov_b32 v{vM}, 0xff800000
    v_mov_b32 v{vL}, 0
    v_mov_b32 v{vO}, 0
    v_mov_b32 v{vO+1}, 0
    v_mov_b32 v{vO+2}, 0
    v_mov_b32 v{vO+3}, 0
    s_mov_b32 s{sC}, {f32(c_scale)}
    s_waitcnt lgkmcnt(0)
    {tlb_code}
    {clr_code}
    s_cmp_lg_u32 s2, 0
    s_cbranch_scc1 L_noinit_{L}
    v_and_b32 v{vT}, 31, v0
    v_mul_u32_u24 v{vT}, {cstr}, v{vT}
    v_add_u32 v{vT}, {WS_CTR}, v{vT}
    global_store_dwordx2 v{vT}, v[{vO}:{vO+1}], s[{sWS}:{sWS+1}] sc1
    v_mov_b32 v{vN}, 1
    s_waitcnt vmcnt(0)
    global_store_dword v{vO}, v{vN}, s[{sDBG}:{sDBG+1}] sc1
L_noinit_{L}:
    {prg_init}
    s_cmp_lg_u32 s{sSPL}, 0
    s_cbranch_scc1 L_done_{L}
    s_lshl_b32 s{sTMP}, s{sPAIR}, 8
    s_lshr_b32 s{sTM2}, s{sPAIR}, 4
    s_lshl_b32 s{sTM2}, s{sTM2}, 1
    v_lshl_add_u32 v{vT}, v{vT2}, 4, s{sTMP}
    v_and_b32 v{vM}, 7, v0
    v_lshl_add_u32 v{vM}, v{vM}, 1, s{sTMP}
    v_lshl_add_u32 v{vM}, v{vT2}, 6, v{vM}
    v_mov_b32 v{vL}, s{sTM2}
    """)
    for i in range(4):
        a(f"global_load_dwordx4 {q4(hQ, i)}, v{vA}, s[{sQ}:{sQ+1}] offset:{64*i}")
    for i in range(4):
        a(f"global_load_dwordx4 {q4(hK, i)}, v{vT}, s[{sKT}:{sKT+1}] offset:{64*i}")
    for r in range(4):
        a(f"global_load_ushort v{vO+r}, v{vM}, s[{sVT}:{sVT+1}] offset:{16*r}")
    a(f"""
    global_load_ushort v{vN}, v{vL}, s[{sMK}:{sMK+1}]
    s_waitcnt vmcnt(0)
    v_mfma_f32_16x16x32_bf16 {q4(vS)}, {q4(hK,0)}, {q4(hQ,0)}, 0
    v_mfma_f32_16x16x32_bf16 {q4(vS)}, {q4(hK,1)}, {q4(hQ,1)}, {q4(vS)}
    v_mfma_f32_16x16x32_bf16 {q4(vS)}, {q4(hK,2)}, {q4(hQ,2)}, {q4(vS)}
    v_mfma_f32_16x16x32_bf16 {q4(vS)}, {q4(hK,3)}, {q4(hQ,3)}, {q4(vS)}
    v_lshlrev_b32 v{vO}, 16, v{vO}
    v_lshlrev_b32 v{vO+1}, 16, v{vO+1}
    v_lshlrev_b32 v{vO+2}, 16, v{vO+2}
    v_lshlrev_b32 v{vO+3}, 16, v{vO+3}
    v_lshlrev_b32 v{vN}, 16, v{vN}
    v_sub_f32 v{vN}, 1.0, v{vN}
    v_mul_f32 v{vN}, {f32(-1e9*math.log2(math.e))}, v{vN}
    v_cmp_gt_u32 vcc, 16, v0
    s_nop 1
    v_cndmask_b32 v{vL}, 0, 1.0, vcc
    v_fma_f32 v{vM}, v{vS}, s{sC}, v{vN}
L_done_{L}:
    """)
    st(3)
    a(f"""
    s_mul_i32 s{sTMP}, s{sWAVE}, 1536
    v_lshlrev_b32 v{vKO}, 4, v0
    v_lshlrev_b32 v{vVO}, 3, v0
    v_add_u32 v{vT}, s{sTMP}, v{vKO}
    v_add_u32 v{vT2}, s{sTMP}, v{vVO}
    ds_write_b128 v{vT}, {q4(vO)}
    ds_write_b64 v{vT2}, v[{vM}:{vL}] offset:1024
    s_cmp_eq_u32 s{sWAVE}, {NW}
    s_waitcnt lgkmcnt(0)
    s_cbranch_scc1 L_end_{L}
    s_barrier
    s_cmp_lg_u32 s{sWAVE}, 0
    s_cbranch_scc1 L_end_{L}
    """)

    def merge(n):
        ML = CB + 4 * n
        a(f"v_max3_f32 v{vM}, v{ML}, v{ML+2}, v{ML+4}")
        i = 3
        while i < n:
            if i + 1 < n:
                a(f"v_max3_f32 v{vM}, v{vM}, v{ML+2*i}, v{ML+2*i+2}")
                i += 2
            else:
                a(f"v_max_f32 v{vM}, v{vM}, v{ML+2*i}")
                i += 1
        for i in range(n):
            a(f"v_sub_f32 v{ML+2*i}, v{ML+2*i}, v{vM}")
        for i in range(n):
            a(f"v_exp_f32 v{ML+2*i}, v{ML+2*i}")
        a("s_waitcnt vmcnt(0) lgkmcnt(0)" if n == S else "s_waitcnt lgkmcnt(0)")
        a(f"v_mul_f32 v{vL}, v{ML}, v{ML+1}")
        for r in range(4):
            a(f"v_mul_f32 v{vO+r}, v{ML}, v{CB+r}")
        for i in range(1, n):
            a(f"v_fmac_f32 v{vL}, v{ML+2*i}, v{ML+2*i+1}")
            for r in range(4):
                a(f"v_fmac_f32 v{vO+r}, v{ML+2*i}, v{CB+4*i+r}")

    for i in range(NP):
        a(f"ds_read_b64 v[{CB+4*NP+2*i}:{CB+4*NP+2*i+1}], v{vVO} offset:{1536*i+1024}")
    for i in range(NP):
        a(f"ds_read_b128 {q4(CB,i)}, v{vKO} offset:{1536*i}")
    a(f"""
    s_lshl_b32 s{sTMP}, s2, 11
    v_add_u32 v{vT}, s{sTMP}, v{vKO}
    v_add_u32 v{vT2}, s{sTMP}, v{vVO}
    s_lshl_b32 s{sTMP}, s{sPAIR}, 14
    v_add_u32 v{vKO}, s{sTMP}, v{vKO}
    v_add_u32 v{vVO}, s{sTMP}, v{vVO}
    s_mul_i32 s{sTMP}, s{sPAIR}, {cstr}
    s_add_u32 s{sTMP}, s{sTMP}, {WS_CTR}
    s_add_u32 s{sCTR}, s{sWS}, s{sTMP}
    s_addc_u32 s{sCTR+1}, s{sWS+1}, 0
    s_mov_b32 s{sTK}, 1
    s_waitcnt lgkmcnt({0 if stamp else NP})
    """)
    merge(NP)
    a(f"""
    global_store_dwordx4 v{vT}, {q4(vO)}, s[{sWS}:{sWS+1}] sc1
    global_store_dwordx2 v{vT2}, v[{vM}:{vL}], s[{sWS}:{sWS+1}] offset:1024 sc1
    """)
    st(4)
    a(f"""
L_rdy_{L}:
    s_cmp_lg_u32 s{sFLAG}, 0
    s_cbranch_scc1 L_go_{L}
    s_atomic_add s{sFLAG}, s[{sDBG}:{sDBG+1}], 0 glc
    s_waitcnt lgkmcnt(0)
    s_branch L_rdy_{L}
L_go_{L}:
    s_waitcnt vmcnt(0)
    s_atomic_add s{sTK}, s[{sCTR}:{sCTR+1}], 4 glc
    s_waitcnt lgkmcnt(0)
    """)
    st(5)

    def dump():
        if diag:
            a(f"s_branch L_diag_{L}")
            return
        trace_store = ""
        if trace:
            trace_store = (f"s_lshl_b32 s{sTM2}, s2, 8\ns_add_u32 s{sTM2}, s{sTM2}, {WS_STAMP + 0x10000}\n"
                           f"v_lshl_add_u32 v{vT2}, v0, 2, s{sTM2}\nglobal_store_dword v{vT2}, v{vZ2}, s[{sWS}:{sWS+1}]")
        a(f"""
        s_getreg_b32 s{sTMP}, hwreg(HW_REG_XCC_ID)
        s_waitcnt lgkmcnt(0)
        v_mov_b32 v{vS}, s{sT}
        v_mov_b32 v{vS+1}, s{sT+12}
        v_mov_b32 v{vS+2}, s{sTMP}
        v_mov_b32 v{vS+3}, s{sTK}
L_hold_{L}:
        s_memrealtime s[{sPC}:{sPC+1}]
        s_waitcnt lgkmcnt(0)
        s_sub_u32 s{sPC}, s{sPC}, s{sT}
        s_cmp_lt_u32 s{sPC}, 9000
        s_cbranch_scc1 L_hold_{L}
        s_lshl_b32 s{sTMP}, s2, 4
        s_add_u32 s{sTMP}, s{sTMP}, {WS_STAMP}
        v_mov_b32 v{vT}, s{sTMP}
        {trace_store}
        s_mov_b64 exec, 1
        global_store_dwordx4 v{vT}, {q4(vS)}, s[{sWS}:{sWS+1}]
        s_lshl_b32 s{sTMP}, s2, 5
        s_add_u32 s{sTMP}, s{sTMP}, {WS_STAMP + 0x1000}
        v_mov_b32 v{vT}, s{sTMP}
        """)
        for i in range(7):
            a(f"v_mov_b32 v{vT2}, s{sT+2*i}\nglobal_store_dword v{vT}, v{vT2}, s[{sWS}:{sWS+1}] offset:{4*i}")

    a(f"s_cmp_lg_u32 s{sTK}, {S-1}\ns_cbranch_scc1 {'L_notlast_' if stamp else 'L_end_'}{L}")
    a(f"""
    v_add_u32 v{vT}, 0x1000, v{vVO}
    v_add_u32 v{vT2}, 0x3000, v{vVO}
    v_add_u32 v{vA}, 0x1000, v{vKO}
    v_add_u32 v{vN}, 0x3000, v{vKO}
    """)
    for i in range(S):
        reg, o = (vT, 2048 * i - 4096) if i < 4 else (vT2, 2048 * i - 12288)
        a(f"global_load_dwordx2 v[{CB+4*S+2*i}:{CB+4*S+2*i+1}], v{reg}, s[{sWS}:{sWS+1}] offset:{o+1024} sc1")
    for i in range(S):
        reg, o = (vA, 2048 * i - 4096) if i < 4 else (vN, 2048 * i - 12288)
        a(f"global_load_dwordx4 {q4(CB,i)}, v{reg}, s[{sWS}:{sWS+1}] offset:{o} sc1")
    a(f"""
    v_bfe_u32 v{vT}, v0, 3, 1
    v_lshl_add_u32 v{vA}, v{vT}, 8, s{sP9}
    v_lshrrev_b32 v{vT}, 4, v0
    v_lshl_add_u32 v{vA}, v{vT}, 6, v{vA}
    v_and_b32 v{vT}, 7, v0
    v_lshl_add_u32 v{vA}, v{vT}, 1, v{vA}
    s_waitcnt vmcnt({S})
    """)
    merge(S)
    a(f"""
    v_mov_b32 v{vT2}, v{vL}
    s_nop 1
    v_permlane16_swap_b32 v{vL}, v{vT2}
    v_add_f32 v{vL}, v{vL}, v{vT2}
    v_mov_b32 v{vT2}, v{vL}
    s_nop 1
    v_permlane32_swap_b32 v{vL}, v{vT2}
    v_add_f32 v{vL}, v{vL}, v{vT2}
    v_rcp_f32 v{vL}, v{vL}
    s_nop 0
    v_mul_f32 v{vO}, v{vO}, v{vL}
    v_mul_f32 v{vO+1}, v{vO+1}, v{vL}
    v_mul_f32 v{vO+2}, v{vO+2}, v{vL}
    v_mul_f32 v{vO+3}, v{vO+3}, v{vL}
    v_cvt_pk_bf16_f32 v{vO}, v{vO}, v{vO+1}
    v_cvt_pk_bf16_f32 v{vO+2}, v{vO+2}, v{vO+3}
    global_store_short v{vA}, v{vO}, s[{sOUT}:{sOUT+1}] {oflags}
    global_store_short_d16_hi v{vA}, v{vO}, s[{sOUT}:{sOUT+1}] offset:16 {oflags}
    global_store_short v{vA}, v{vO+2}, s[{sOUT}:{sOUT+1}] offset:32 {oflags}
    global_store_short_d16_hi v{vA}, v{vO+2}, s[{sOUT}:{sOUT+1}] offset:48 {oflags}
    """)
    if stamp:
        a(f"L_notlast_{L}:")
        st(6)
        dump()
    if diag:
        a(f"L_diag_{L}:")
        diag_tail(a, L, sDBG, sT, sT + 2 * int(diag[-1]), 66, diag[:-1])
    a(f"L_end_{L}:\ns_endpgm")
    lds = SCL + NW * 128 * T
    return dict(label=label, body=a.text(), grid=NWG, block=64 * NP, lds=lds, nvgpr=nv, acc=(nv + 3) // 4 * 4,
                nsgpr=102 if table else 76 if stamp or ctl else 52)


if __name__ == "__main__":
    k = gen(NAME + "_kernel")
    sys.stdout.write(final_file(k))
```

```python
import math
import sys

from diag import diag_tail
from gen1 import Asm, NAME, bench_file, f32, final_file, kernel_text, meta
from gen4 import NAMES, parse_map
from gen5 import MAPS

WS_ML = 0x80000
WS_CTR = 0x100000
WS_RNK = 0x110000
WS_STAMP = 0x1000000


def gen(label, amap="l1", flags="nt", stamp=0, sbar=4, diag="", table=0, thr=3, zt=3, skew=2, sx=0, sy=2, sy1=0,
        sy3=0, el=2, early=0, bskip=4, xfl="sc1", clrp=0, otouch=0, oflags="", fake=0, rk="", rlv="64210000", rw=16, rthr=3, kk=-1, klv="88422000", kw=8, ez=0, ethr=3, trace=0, dbuf=0, pk=0, bmask=0, qpos=0, qt=0, pp=0, pz=1, pthr=3, pend=14, rsk=0, ka=0, rate=0):
    NW, S, T, NB = 4, 8, 64, 4
    NWG = 32 * S
    NR = T // NB
    if diag:
        stamp = 1
    W = parse_map(MAPS.get(amap, amap))
    TB = ["b", "t0", "t1", "t2", "t3", "t4"]
    sW = 76
    rows = [W["r%d" % j] for j in range(4)]
    plain = all(v & (v - 1) == 0 for v in rows) and all(W[n] & sum(rows) == 0 for n in NAMES[:16])
    gx = table or rsk or not (plain and W["r0"] + W["r1"] < 4096)

    def wt(n):
        if table:
            i = NAMES.index(n)
            return f"s{sW + i + (1 if i >= 16 else 0)}"
        return f"{W[n]:#x}"

    c_scale = (128 ** -0.5) * math.log2(math.e)

    vLA = 1
    vZ, vZ2 = 2, 3
    vO = 4
    vM, vL = 8, 9
    vT, vT2, vA, vN = 10, 11, 12, 13
    vPO, vPM = 14, 15
    vS = 16
    vQ = 24
    vMASK = 28
    vB = 32
    vLN = 48
    vLV = 52
    vAD = 56
    RING0 = 64
    vXO, vXM = RING0, RING0 + 28
    vAO, vAM = 48, 55
    vS2 = RING0 + 16 * NB
    vB2 = vS2 + 8
    vTR = vB2 + 16
    nv = vTR + 4 if trace else vB2 + 16 if dbuf else vB2

    def ring(b, i):
        o = RING0 + 16 * b + 4 * i
        return "v[%d:%d]" % (o, o + 3)

    def q4(base, i=0):
        return "v[%d:%d]" % (base + 4 * i, base + 4 * i + 3)

    sQ, sK, sV, sKT, sVT, sMK, sOUT, sDBG, sWS = 4, 6, 8, 10, 12, 14, 16, 18, 20
    sEX = 22
    sD = 24
    sNAN = 28
    sSK = 31
    sPAIR, sSPL, sWAVE, sOFF, sC, sIT, sTMP, sP9 = 32, 33, 34, 35, 36, 37, 38, 39
    sTI, sCLR, sTK, sFLAG, sTM2, sWB = 40, 41, 42, 44, 45, 47
    sRM, sRK, sRC = 43, 46, 66
    sPC = 48
    sCTR = 50
    sT = 52
    L = label
    LMX, LTR, LFO, LFL, SCL = 0, 1280, 2304, 6400, 7424
    a = Asm()

    def st(i):
        if stamp:
            a(f"s_memrealtime s[{sT+2*i}:{sT+2*i+1}]")

    def xor_bits(dst, init, src, names):
        cur = init
        for j, n in enumerate(names):
            if not table and W[n] == 0:
                continue
            a(f"s_bitcmp1_b32 s{src}, {j}")
            if cur is None:
                a(f"s_cselect_b32 s{dst}, {wt(n)}, 0")
            else:
                a(f"s_cselect_b32 s{sTMP}, {wt(n)}, 0\ns_xor_b32 s{dst}, s{cur}, s{sTMP}")
            cur = dst

    def group_off():
        xor_bits(sOFF, sWB, sTI, TB[2:])
        if table:
            a(f"s_and_b32 s{sOFF}, s{sOFF}, 0x7fff00")
        a(f"s_add_u32 s{sTI}, s{sTI}, 1")

    def addr(b):
        if b:
            a(f"s_xor_b32 s{sOFF}, s{sOFF}, s{sSK}")
        if b == 2:
            a(f"s_xor_b32 s{sOFF}, s{sOFF}, {wt('t0')}")
        if gx:
            for i in range(4):
                a(f"v_xor_b32 v{vAD + 4*(b & 1) + i}, s{sOFF}, v{vLN + i}")

    def issue(b):
        for i in range(4):
            if gx:
                a(f"buffer_load_dwordx4 {ring(b,i)}, v{vAD + 4*(b & 1) + i}, s[{sD}:{sD+3}], 0 offen {flags}")
            else:
                o = (i & 1) * W["r0"] + (i >> 1) * W["r1"]
                a(f"buffer_load_dwordx4 {ring(b,i)}, v{vLN}, s[{sD}:{sD+3}], s{sOFF} offen offset:{o} {flags}")

    def lane_rows(dst, bit):
        if not gx and W["r3"] == W["r2"] << 1:
            a(f"v_bfe_u32 v{vZ}, v0, {bit}, 2\nv_lshl_add_u32 v{dst}, v{vZ}, {W['r2'].bit_length() - 1}, v{dst}")
        else:
            for j in range(2):
                a(f"v_bfe_i32 v{vZ}, v0, {bit + j}, 1\nv_and_b32 v{vZ}, {wt('r%d' % (2 + j))}, v{vZ}\n"
                  f"v_xor_b32 v{dst}, v{dst}, v{vZ}")
        if rsk and (table or sy3):
            m23 = f"s{sW+23}" if table else f"{skw(sy3):#x}"
            a(f"v_bfe_i32 v{vZ}, v0, {bit}, 1\nv_and_b32 v{vZ}, {m23}, v{vZ}\nv_bfe_i32 v{vN}, v0, {bit+1}, 1\n"
              f"v_and_b32 v{vZ}, v{vN}, v{vZ}\nv_xor_b32 v{dst}, v{dst}, v{vZ}")
        if gx:
            a(f"v_xor_b32 v{dst+1}, {wt('r0')}, v{dst}\nv_xor_b32 v{dst+2}, {wt('r1')}, v{dst}")
            if rsk and not table:
                a(f"v_xor_b32 v{dst+3}, {W['r1'] ^ skw(sy1):#x}, v{dst+1}")
            else:
                a(f"v_xor_b32 v{dst+3}, {wt('r1')}, v{dst+1}")
            if rsk and table:
                a(f"v_xor_b32 v{dst+3}, s{sW+22}, v{dst+3}")

    def skw(mask):
        v = 0
        for j, n in enumerate("ABC"):
            if mask >> j & 1:
                v ^= W[n]
        return v

    def lane_sum(reg, op):
        a(f"""
        v_mov_b32 v{vT2}, v{reg}
        s_nop 1
        v_permlane16_swap_b32 v{reg}, v{vT2}
        {op} v{reg}, v{reg}, v{vT2}
        v_mov_b32 v{vT2}, v{reg}
        s_nop 1
        v_permlane32_swap_b32 v{reg}, v{vT2}
        {op} v{reg}, v{reg}, v{vT2}
        """)

    wsload = "s_load_dwordx2 s[20:21], s[0:1], 64"
    if ka:
        a(f"s_load_dwordx16 s[4:19], s[0:1], 0\ns_cmp_ge_u32 s2, {NWG}\ns_cbranch_scc1 L_end_{L}")
    else:
        a(f"s_cmp_ge_u32 s2, {NWG}\ns_cbranch_scc1 L_end_{L}\ns_load_dwordx16 s[4:19], s[0:1], 0\n{wsload}")
    st(0)
    a(f"""
    v_lshrrev_b32 v{vN}, 6, v0
    s_and_b32 s{sSPL}, s2, 7
    s_lshr_b32 s{sPAIR}, s2, 3
    v_readfirstlane_b32 s{sWAVE}, v{vN}
    v_bfe_u32 v{vT2}, v0, 4, 2
    s_lshl_b32 s{sP9}, s{sPAIR}, 9
    v_bfe_u32 v{vA}, v0, 3, 1
    v_lshl_add_u32 v{vA}, v{vA}, 8, s{sP9}
    s_cmp_eq_u32 s{sWAVE}, {NW}
    s_cbranch_scc1 L_help_{L}
    """)
    if table:
        a(f"""
        s_waitcnt lgkmcnt(0)
        s_load_dwordx16 s[{sW}:{sW+15}], s[{sDBG}:{sDBG+1}], 64
        s_load_dwordx8 s[{sW+16}:{sW+23}], s[{sDBG}:{sDBG+1}], 128
        s_waitcnt lgkmcnt(0)
        """)
        xor_bits(sWB, None, sWAVE, ["w0", "w1"])
        a(f"s_cmp_eq_u32 s{sWAVE}, 3\ns_cselect_b32 s{sTMP}, s{sW+16}, 0\ns_xor_b32 s{sWB}, s{sWB}, s{sTMP}")
    else:
        x3 = W["w0"] ^ W["w1"] ^ (skw(sx) if skew else 0)
        a(f"s_cmp_eq_u32 s{sWAVE}, 1\ns_cselect_b32 s{sWB}, {W['w0']:#x}, 0")
        a(f"s_cmp_eq_u32 s{sWAVE}, 2\ns_cselect_b32 s{sWB}, {W['w1']:#x}, s{sWB}")
        a(f"s_cmp_eq_u32 s{sWAVE}, 3\ns_cselect_b32 s{sWB}, {x3:#x}, s{sWB}")
    xor_bits(sWB, sWB, 2, list("ABCDEFGH"))
    if table:
        a(f"s_and_b32 s{sWB}, s{sWB}, 0x7fff00")
    a(f"""
    v_and_b32 v{vT}, 3, v0
    v_lshlrev_b32 v{vT}, 4, v{vT}
    v_lshl_add_u32 v{vLN}, v{vT2}, 6, v{vT}
    v_add_u32 v{vA}, v{vA}, v{vLN}
    """)
    lane_rows(vLN, 2)
    a(f"""
    s_mov_b32 s{sOFF}, s{sWB}
    s_lshl_b32 s{sTMP}, s{sPAIR}, 23
    s_mov_b32 s{sD+2}, 0x800000
    s_mov_b32 s{sD+3}, 0x20000
    """)
    addr(0)
    if diag.endswith("5"):
        st(5)
    a(f"""
    s_waitcnt lgkmcnt(0)
    s_add_u32 s{sD}, s{sK}, s{sTMP}
    s_addc_u32 s{sD+1}, s{sK+1}, 0
    """)
    st(1)
    if qt:
        a(f"s_load_dword s{sTM2}, s[{sQ}:{sQ+1}], 0")
    if qpos == 0:
        a(f"global_load_dwordx4 {q4(vQ)}, v{vA}, s[{sQ}:{sQ+1}]")
    issue(0)
    if qpos == 1:
        a(f"global_load_dwordx4 {q4(vQ)}, v{vA}, s[{sQ}:{sQ+1}]")
    a(f"s_add_u32 s{sV}, s{sV}, s{sTMP}\ns_addc_u32 s{sV+1}, s{sV+1}, 0")
    if ka:
        a(wsload)
    if table:
        a(f"s_mov_b32 s{sSK}, 0")
        for w, word in ((2, 21),) if rsk else ((2, 21), (1, 22), (3, 23)):
            a(f"s_cmp_eq_u32 s{sWAVE}, {w}\ns_cselect_b32 s{sSK}, s{sW+word}, s{sSK}")
        a(f"s_xor_b32 s{sSK}, s{sSK}, {wt('b')}")
    else:
        a(f"s_mov_b32 s{sSK}, {W['b']:#x}")
        for w, mask in ((2, sy),) if rsk else ((2, sy), (1, sy1), (3, sy3)):
            if skew >= 2 and mask:
                a(f"s_cmp_eq_u32 s{sWAVE}, {w}\ns_cselect_b32 s{sSK}, {W['b'] ^ skw(mask):#x}, s{sSK}")
    for b in range(1, NB):
        addr(b)
        issue(b)
        if qpos == b + 1:
            a(f"global_load_dwordx4 {q4(vQ)}, v{vA}, s[{sQ}:{sQ+1}]")
    a(f"v_and_b32 v{vLV}, 15, v0\nv_lshlrev_b32 v{vLV}, 4, v{vLV}")
    lane_rows(vLV, 4)
    a(f"""
    s_mov_b32 s{sTI}, 1
    s_mov_b32 s{sC}, {f32(c_scale)}
    s_mov_b32 s{sEX}, 0x01010101
    s_mov_b32 s{sEX+1}, 0x01010101
    s_lshl_b32 s{sTMP}, s{sPAIR}, 8
    s_add_u32 s{sTMP}, s{sTMP}, {WS_CTR}
    {"s_waitcnt lgkmcnt(0)" if ka else ""}
    s_add_u32 s{sCTR}, s{sWS}, s{sTMP}
    s_addc_u32 s{sCTR+1}, s{sWS+1}, 0
    s_mov_b32 s{sTK}, 1
    s_lshl_b32 s{sTMP}, s{sWAVE}, 13
    s_add_u32 s{sTMP}, s{sTMP}, {SCL}
    v_bfe_u32 v{vLA}, v0, 3, 1
    v_lshl_add_u32 v{vLA}, v{vLA}, 6, s{sTMP}
    v_lshl_add_u32 v{vLA}, v{vT2}, 4, v{vLA}
    v_lshlrev_b32 v{vZ2}, 2, v0
    v_and_b32 v0, 63, v0
    v_mov_b32 v{vM}, 0xff800000
    v_mov_b32 v{vL}, 0
    v_mov_b32 v{vO}, 0
    v_mov_b32 v{vO+1}, 0
    v_mov_b32 v{vO+2}, 0
    v_mov_b32 v{vO+3}, 0
    v_and_b32 v{vT}, 1, v0
    v_lshlrev_b32 v{vT}, 4, v{vT}
    v_mov_b32 v{vA}, 0xffff
    v_lshlrev_b32 v{vA}, v{vT}, v{vA}
    v_bfe_u32 v{vT}, v0, 1, 2
    """)
    for r in range(4):
        a(f"v_cmp_eq_u32 vcc, {r}, v{vT}\ns_nop 1\nv_cndmask_b32 v{vMASK+r}, 0, v{vA}, vcc")
    steady = 4 * (NB - 1)
    if qpos > 1:
        a(f"s_waitcnt vmcnt({4 * (NB - qpos)})")
    if qt:
        a("s_waitcnt lgkmcnt(0)")
    if stamp:
        a(f"s_waitcnt vmcnt({steady})")
    st(2)

    vchk = [int(x) for x in str(rk).lstrip("r").split("_") if x]
    ranked = bool(vchk) or kk >= 0
    SPREAD = [0x00, 0x01, 0x11, 0x49, 0x55, 0x6d, 0x77, 0x7f, 0xff]

    def rank_ask(tag, it, word):
        a(f"""
        s_cmp_lg_u32 s{sIT}, {it}
        s_cbranch_scc1 L_ra{tag}_{L}
        s_mov_b32 s{sRK}, 7
        s_cmp_eq_u32 s{sFLAG}, 0
        s_cbranch_scc1 L_ra{tag}_{L}
        s_mov_b32 s{sRK}, 1
        s_atomic_add s{sRK}, s[{sRC}:{sRC+1}], {4*word} glc
L_ra{tag}_{L}:
        """)

    def rank_use(tag, it, levels, window, front):
        pats = [((1 << int(c)) - 1) if front else SPREAD[int(c)] for c in str(levels).lstrip("l")]
        lo = sum(p << (8 * i) for i, p in enumerate(pats[:4]))
        hi = sum(p << (8 * i) for i, p in enumerate(pats[4:]))
        rep = 1 if front else sum(1 << (8 * i) for i in range(window // 8))
        a(f"""
        s_cmp_lg_u32 s{sIT}, {it}
        s_cbranch_scc1 L_ru{tag}_{L}
        s_waitcnt lgkmcnt(0)
        s_mov_b32 s{sNAN}, {lo:#x}
        s_mov_b32 s{sNAN+1}, {hi:#x}
        s_lshl_b32 s{sRK}, s{sRK}, 3
        s_lshr_b64 s[{sNAN}:{sNAN+1}], s[{sNAN}:{sNAN+1}], s{sRK}
        s_and_b32 s{sRM}, s{sNAN}, 0xff
        s_mul_i32 s{sRM}, s{sRM}, {rep:#x}
L_ru{tag}_{L}:
        """)

    def paced(tag, level):
        a(f"s_bitcmp0_b32 s{sRM}, 0\ns_cbranch_scc1 L_pc{tag}_{L}\ns_waitcnt vmcnt({level})\nL_pc{tag}_{L}:\n"
          f"s_lshr_b32 s{sRM}, s{sRM}, 1")

    if ranked:
        a(f"""
        s_mov_b32 s{sRM}, 0
        s_mov_b32 s{sFLAG}, 0
        s_lshl_b32 s{sTMP}, s{sPAIR}, 2
        s_add_u32 s{sTMP}, s{sTMP}, s{sWAVE}
        s_lshl_b32 s{sTMP}, s{sTMP}, 8
        s_add_u32 s{sTMP}, s{sTMP}, {WS_RNK}
        s_add_u32 s{sRC}, s{sWS}, s{sTMP}
        s_addc_u32 s{sRC+1}, s{sWS+1}, 0
        """)

    sTS = 72

    def tr(tag, lo, hi):
        if trace:
            a(f"""
            s_sub_u32 s{sTMP}, s{sIT}, {lo}
            s_cmp_gt_u32 s{sTMP}, {hi - lo}
            s_cbranch_scc1 L_tr{tag}_{L}
            s_waitcnt lgkmcnt(0)
            v_writelane_b32 v{vTR}, s{sTS}, m0
            s_add_u32 m0, m0, 1
            s_memrealtime s[{sTS}:{sTS+1}]
L_tr{tag}_{L}:
            """)

    if trace:
        a(f"s_waitcnt lgkmcnt(0)\ns_mov_b32 s{sTS}, s{sT}\ns_mov_b32 m0, 0\nv_mov_b32 v{vTR}, 0")

    def ktile(b):
        tr(f"k{b}", *((13, 15) if trace == 1 else (0, 6) if trace == 2 else (0, 15) if b == 0 else (99, 99)))
        addr(b)
        a(f"s_waitcnt vmcnt({steady})")
        for i in range(4):
            a(f"v_mfma_f32_16x16x32_bf16 {q4(vB,i)}, {ring(b,i)}, {q4(vQ)}, 0")
        if kk >= 0:
            paced(f"k{b}", thr)
        if pp and b < pz:
            a(f"s_add_u32 s{sTMP}, s{sIT}, 1\ns_and_b32 s{sTMP}, s{sTMP}, {pp-1}\ns_cbranch_scc1 L_kp{b}_{L}\n"
              f"s_waitcnt vmcnt({pthr})\nL_kp{b}_{L}:")
        if kk < 0 and b < zt:
            a(f"s_cmp_lg_u32 s{sIT}, {NR-1}\ns_cbranch_scc1 L_nt{b}_{L}\ns_waitcnt vmcnt({thr})\nL_nt{b}_{L}:")
        issue(b)
        a("s_nop 0")
        sq = vS + 4 * (b & 1)
        for q in range(1, 4):
            for i in range(4):
                d = vB + 4 * i
                a(f"v_add_f32_dpp v{sq+i}, v{d+q}, v{d if q == 1 else sq+i} quad_perm:[{q},{q},{q},{q}] "
                  "row_mask:0xf bank_mask:0xf")
        a(f"""
        v_max3_f32 v{vM}, v{vM}, v{sq}, v{sq+1}
        v_max3_f32 v{vM}, v{vM}, v{sq+2}, v{sq+3}
        s_mov_b64 exec, s[{sEX}:{sEX+1}]
        ds_write_b128 v{vLA}, {q4(sq)} offset:{128*b}
        s_mov_b64 exec, -1
        """)

    def fetch_others():
        for i in range(7):
            a(f"global_load_dwordx2 v[{vXM+2*i}:{vXM+2*i+1}], v{vAM+i}, s[{sWS}:{sWS+1}] {xfl}")
        for i in range(7):
            a(f"global_load_dwordx4 {q4(vXO,i)}, v{vAO+i}, s[{sWS}:{sWS+1}] {xfl}")

    def elect():
        a(f"""
        s_cmp_lg_u32 s{sWAVE}, 0
        s_cbranch_scc1 L_noel_{L}
L_rdy_{L}:
        s_cmp_lg_u32 s{sFLAG}, 0
        s_cbranch_scc1 L_go_{L}
        s_atomic_add s{sFLAG}, s[{sDBG}:{sDBG+1}], 0 glc
        s_waitcnt lgkmcnt(0)
        s_branch L_rdy_{L}
L_go_{L}:
        s_atomic_add s{sTK}, s[{sCTR}:{sCTR+1}], 0 glc
L_noel_{L}:
        """)

    def vtile(b, left=0):
        if left:
            sq = [vS, vS + 4, vS2, vS2 + 4][b]
            if b < 2:
                a("s_waitcnt lgkmcnt(0)")
            if b == 0:
                for j, q in ((1, vS + 4), (2, vS2), (3, vS2 + 4)):
                    a(f"ds_read_b128 {q4(q)}, v{vLA} offset:{128*j}")
            if left == el:
                elect()
        else:
            tr(f"v{b}", *((1, 4) if trace == 1 else (1, 15) if trace == 3 and b == 0 else (99, 99)))
            sq = vS + 4 * (b & 1)
            a(f"s_waitcnt lgkmcnt(0)\nds_read_b128 {q4(vS + 4 * ((b + 1) & 1))}, v{vLA} offset:{128*(b+1)}")
        for r in range(4):
            a(f"v_fma_f32 v{sq+r}, v{sq+r}, s{sC}, -v{vM}")
        for r in range(4):
            a(f"v_exp_f32 v{sq+r}, v{sq+r}")
        if not left:
            addr(b)
        a("s_nop 0")
        for r in range(4):
            a(f"v_add_f32 v{vL}, v{vL}, v{sq+r}")
        for r in range(4):
            a(f"v_cvt_pk_bf16_f32 v{sq+r}, v{sq+r}, v{sq+r}")
        for r in range(4):
            for j in range(4):
                a(f"v_and_b32 v{vB+4*r+j}, v{vMASK+j}, v{sq+r}")
        if left == 1:
            lane_sum(vL, "v_add_f32")
            a(f"ds_write_b32 v{vZ2}, v{vL} offset:{LFL}")
            if early:
                a(f"s_waitcnt lgkmcnt(0)\ns_cmp_lg_u32 s{sTK}, {S-1}\ns_cbranch_scc1 L_nol1_{L}")
                fetch_others()
                a(f"s_waitcnt vmcnt(14)\ns_branch L_l1w_{L}\nL_nol1_{L}:\ns_waitcnt vmcnt(0)\nL_l1w_{L}:")
            else:
                a("s_waitcnt vmcnt(0)")
        else:
            a(f"s_waitcnt vmcnt({4*(left-1) if left else steady})\ns_nop 0")
        for r in range(4):
            a(f"v_mfma_f32_16x16x32_bf16 {q4(vO)}, {ring(b,r)}, {q4(vB,r)}, {q4(vO)}")
        if not left:
            if ranked:
                paced(f"v{b}", rthr)
            if pp and b < pz:
                a(f"s_and_b32 s{sTMP}, s{sIT}, {pp-1}\ns_cbranch_scc1 L_vp{b}_{L}\ns_cmp_gt_u32 s{sIT}, {pend}\n"
                  f"s_cbranch_scc1 L_vp{b}_{L}\ns_waitcnt vmcnt({pthr})\nL_vp{b}_{L}:")
            if b < zt - 4:
                a(f"s_cmp_lg_u32 s{sIT}, 1\ns_cbranch_scc1 L_vz{b}_{L}\ns_waitcnt vmcnt({thr})\nL_vz{b}_{L}:")
            if ez:
                first = NR - 1 - (ez - 1 - (3 - b)) // 4 if ez > 3 - b else NR
                if first < NR:
                    a(f"s_cmp_lt_u32 s{sIT}, {first}\ns_cbranch_scc1 L_ez{b}_{L}\ns_waitcnt vmcnt({ethr})\nL_ez{b}_{L}:")
            issue(b)

    a(f"""
    s_mov_b32 s{sIT}, 0
L_kloop_{L}:
    """)
    if kk >= 0:
        a(f"s_cmp_lg_u32 s{sIT}, 8\ns_cbranch_scc1 L_kfl_{L}\ns_load_dword s{sFLAG}, s[{sDBG}:{sDBG+1}], 0\n"
          f"s_waitcnt lgkmcnt(0)\nL_kfl_{L}:")
        rank_use("k", NR - 1, klv, kw, True)
        rank_ask("k", kk, 3)
    a(f"""
    s_cmp_lg_u32 s{sIT}, {NR-1}
    s_cbranch_scc1 L_kgo_{L}
    s_mov_b32 s{sD}, s{sV}
    s_mov_b32 s{sD+1}, s{sV+1}
    s_mov_b32 s{sTI}, 0
    s_load_dword s{sFLAG}, s[{sDBG}:{sDBG+1}], 0
    """)
    for i in range(4 if gx else 1):
        a(f"v_mov_b32 v{vLN+i}, v{vLV+i}")
    a(f"L_kgo_{L}:")
    if rate:
        a(f"s_cmp_lg_u32 s{sIT}, 6\ns_cbranch_scc1 L_rs1_{L}\ns_memrealtime s[72:73]\nL_rs1_{L}:")
        a(f"s_cmp_lg_u32 s{sIT}, 14\ns_cbranch_scc1 L_rs2_{L}\ns_memrealtime s[74:75]\nL_rs2_{L}:")
    group_off()
    assert sbar
    for b in range(NB):
        if b % sbar == 0:
            a(f"s_cmp_lt_u32 s{sIT}, {bskip}\ns_cbranch_scc1 L_knb{b}_{L}")
            if bmask:
                a(f"s_and_b32 s{sTMP}, s{sIT}, {bmask}\ns_cbranch_scc1 L_knb{b}_{L}")
            a(f"s_barrier\nL_knb{b}_{L}:")
        ktile(b)
    a(f"""
    v_add_u32 v{vLA}, {128*NB}, v{vLA}
    s_add_u32 s{sIT}, s{sIT}, 1
    s_cmp_lt_u32 s{sIT}, {NR}
    s_cbranch_scc1 L_kloop_{L}
    v_subrev_u32 v{vLA}, {128*T}, v{vLA}
    """)
    lane_sum(vM, "v_max_f32")
    a(f"""
    v_mul_f32 v{vT2}, s{sC}, v{vM}
    v_lshlrev_b32 v{vT}, 2, v0
    v_lshlrev_b32 v{vZ}, 4, v0
    v_mov_b32_dpp v{vM}, v{vT2} row_newbcast:0 row_mask:0xf bank_mask:0x3
    s_nop 1
    v_mov_b32_dpp v{vM}, v{vT2} row_newbcast:8 row_mask:0xf bank_mask:0xc
    ds_write_b32 v{vZ2}, v{vM} offset:{LMX}
    s_waitcnt lgkmcnt(0)
    s_barrier
    """)
    for i in range(NW + 1):
        a(f"ds_read_b32 v{vB+i}, v{vT} offset:{LMX + 256*i}")
    a(f"""
    ds_read_b128 {q4(vB,2)}, v{vZ} offset:{LTR}
    ds_read_b128 {q4(vS)}, v{vLA}
    s_mov_b32 s{sIT}, 1
    s_cmp_lg_u32 s{sWAVE}, 0
    s_waitcnt lgkmcnt({0 if trace else 1})
    v_max3_f32 v{vM}, v{vB}, v{vB+1}, v{vB+2}
    v_max3_f32 v{vM}, v{vM}, v{vB+3}, v{vB+4}
    s_cbranch_scc1 L_vloop_{L}
    v_sub_f32 v{vT}, v{vB+4}, v{vM}
    v_exp_f32 v{vT}, v{vT}
    v_cmp_gt_u32 vcc, 16, v0
    v_mul_f32 v{vO}, v{vT}, v{vB+8}
    v_mul_f32 v{vO+1}, v{vT}, v{vB+9}
    v_mul_f32 v{vO+2}, v{vT}, v{vB+10}
    v_mul_f32 v{vO+3}, v{vT}, v{vB+11}
    v_cndmask_b32 v{vL}, 0, v{vT}, vcc
L_vloop_{L}:
    """)
    if rate:
        a(f"s_cmp_lg_u32 s{sIT}, 4\ns_cbranch_scc1 L_rs3_{L}\ns_memrealtime s[68:69]\nL_rs3_{L}:")
        a(f"s_cmp_lg_u32 s{sIT}, 12\ns_cbranch_scc1 L_rs4_{L}\ns_memrealtime s[70:71]\nL_rs4_{L}:")
    for n, it in enumerate(vchk):
        rank_use(f"v{n}", it + 1, rlv, rw, False)
        rank_ask(f"v{n}", it, n)
    group_off()
    for b in range(NB):
        if b % sbar == 0:
            if bmask:
                a(f"s_and_b32 s{sTMP}, s{sIT}, {bmask}\ns_cbranch_scc1 L_vnb{b}_{L}\ns_barrier\nL_vnb{b}_{L}:")
            else:
                a("s_barrier")
        vtile(b)
    a(f"""
    v_add_u32 v{vLA}, {128*NB}, v{vLA}
    s_add_u32 s{sIT}, s{sIT}, 1
    s_cmp_lt_u32 s{sIT}, {NR}
    s_cbranch_scc1 L_vloop_{L}
    """)
    quads = [vS, vS + 4, vS2, vS2 + 4]

    def probs(sq):
        for r in range(4):
            a(f"v_fma_f32 v{sq+r}, v{sq+r}, s{sC}, -v{vM}")
        for r in range(4):
            a(f"v_exp_f32 v{sq+r}, v{sq+r}")
        a("s_nop 0")
        for r in range(4):
            a(f"v_add_f32 v{vL}, v{vL}, v{sq+r}")
        for r in range(4):
            a(f"v_cvt_pk_bf16_f32 v{sq+r}, v{sq+r}, v{sq+r}")

    def frags(dst, sq):
        for r in range(4):
            for j in range(4):
                a(f"v_and_b32 v{dst+4*r+j}, v{vMASK+j}, v{sq+r}")

    def pv(b, src):
        a(f"s_waitcnt vmcnt({4*(3-b)})")
        for r in range(4):
            a(f"v_mfma_f32_16x16x32_bf16 {q4(vO)}, {ring(b,r)}, {q4(src,r)}, {q4(vO)}")

    if dbuf:
        for j in range(1, 4):
            a(f"ds_read_b128 {q4(quads[j])}, v{vLA} offset:{128*j}")
        a("s_waitcnt lgkmcnt(0)" if trace else "s_waitcnt lgkmcnt(3)")
        probs(quads[0])
        frags(vB, quads[0])
        a("s_waitcnt lgkmcnt(0)")
        probs(quads[1])
        frags(vB2, quads[1])
        pv(0, vB)
        if el == 3:
            elect()
        probs(quads[2])
        probs(quads[3])
        frags(vB, quads[2])
        lane_sum(vL, "v_add_f32")
        a(f"ds_write_b32 v{vZ2}, v{vL} offset:{LFL}")
    else:
        vtile(0, 4)
    a(f"""
    s_lshl_b32 s{sTMP}, s2, 10
    v_lshl_add_u32 v{vPO}, v0, 4, s{sTMP}
    s_lshl_b32 s{sTMP}, s{sPAIR}, 8
    s_lshl_b32 s{sTM2}, s{sSPL}, 4
    s_add_u32 s{sTMP}, s{sTMP}, s{sTM2}
    s_add_u32 s{sTMP}, s{sTMP}, {WS_ML}
    v_and_b32 v{vPM}, 8, v0
    v_add_u32 v{vPM}, s{sTMP}, v{vPM}
    """)
    for i in range(7):
        a(f"v_xor_b32 v{vAO+i}, {(i+1) << 10:#x}, v{vPO}\nv_xor_b32 v{vAM+i}, {(i+1) << 4:#x}, v{vPM}")
    a(f"""
    v_bfe_u32 v{vT}, v0, 3, 1
    v_lshl_add_u32 v{vA}, v{vT}, 8, s{sP9}
    v_lshrrev_b32 v{vT}, 4, v0
    v_lshl_add_u32 v{vA}, v{vT}, 6, v{vA}
    v_and_b32 v{vT}, 7, v0
    v_lshl_add_u32 v{vA}, v{vT}, 1, v{vA}
    v_lshlrev_b32 v{vN}, 2, v{vZ2}
    """)
    if otouch == 1:
        a(f"s_load_dword s{sTM2}, s[{sOUT}:{sOUT+1}], s{sP9}")
    if dbuf:
        assert not early
        pv(1, vB2)
        if el == 2:
            elect()
        frags(vB2, quads[3])
        pv(2, vB)
        if el == 1:
            elect()
        pv(3, vB2)
    else:
        for b in range(1, NB):
            vtile(b, NB - b)
    st(3)
    a(f"""
    s_cmp_eq_u32 s{sWAVE}, 0
    s_cbranch_scc1 L_w0_{L}
    s_nop 5
    ds_write_b128 v{vN}, {q4(vO)} offset:{LFO}
    s_waitcnt lgkmcnt(0)
    s_barrier
    s_endpgm
L_w0_{L}:
    """)
    if el == 0:
        elect()
    if not early:
        a(f"s_waitcnt lgkmcnt(0)\ns_cmp_lg_u32 s{sTK}, {S-1}\ns_cbranch_scc1 L_nol1_{L}")
        fetch_others()
        if otouch == 2:
            a(f"global_load_ushort v{vT}, v{vA}, s[{sOUT}:{sOUT+1}]")
        a(f"L_nol1_{L}:")
    a("s_barrier")
    for i in range(1, NW):
        a(f"ds_read_b32 v{vS+i}, v{vZ2} offset:{LFL + 256*i}")
    for i in range(1, NW):
        a(f"ds_read_b128 {q4(vB,i)}, v{vN} offset:{LFO + 1024*i}")
    a(f"""
    v_min_u32 v{vM}, -2, v{vM}
    s_cmp_eq_u32 s{sTK}, {S-1}
    s_waitcnt lgkmcnt(0)
    v_add_f32 v{vS+1}, v{vS+1}, v{vS+2}
    v_add_f32 v{vL}, v{vL}, v{vS+3}
    """)
    for r in range(4):
        a(f"v_add_f32 v{vB+4+r}, v{vB+4+r}, v{vB+8+r}\nv_add_f32 v{vO+r}, v{vO+r}, v{vB+12+r}")
    for r in range(4):
        a(f"v_add_f32 v{vO+r}, v{vO+r}, v{vB+4+r}")
    a(f"v_add_f32 v{vL}, v{vL}, v{vS+1}")
    st(4)
    a(f"s_cbranch_scc1 L_fin_{L}")
    for r in (vO, vO + 1, vO + 2, vO + 3, vL):
        a(f"v_min_u32 v{r}, -2, v{r}")
    a(f"""
    global_store_dwordx4 v{vPO}, {q4(vO)}, s[{sWS}:{sWS+1}] sc1
    s_mov_b64 exec, 0x101
    global_store_dwordx2 v{vPM}, v[{vM}:{vL}], s[{sWS}:{sWS+1}] sc1
    {f"s_mov_b64 exec, -1" if stamp else ""}
    {f"s_branch L_notlast_{L}" if stamp else "s_endpgm"}
L_miss_{L}:
    """)
    fetch_others()
    if otouch == 2:
        a(f"global_load_ushort v{vT}, v{vA}, s[{sOUT}:{sOUT+1}]")
    a(f"""
L_fin_{L}:
    s_waitcnt vmcnt({8 if otouch == 2 else 7})
    v_max3_u32 v{vS}, v{vXM}, v{vXM+2}, v{vXM+4}
    v_max3_u32 v{vS}, v{vS}, v{vXM+6}, v{vXM+8}
    v_max3_u32 v{vS}, v{vS}, v{vXM+10}, v{vXM+12}
    v_cmp_eq_u32 vcc, -1, v{vS}
    v_max3_f32 v{vS+1}, v{vM}, v{vXM}, v{vXM+2}
    v_max3_f32 v{vS+1}, v{vS+1}, v{vXM+4}, v{vXM+6}
    v_max3_f32 v{vS+1}, v{vS+1}, v{vXM+8}, v{vXM+10}
    v_max_f32 v{vS+1}, v{vS+1}, v{vXM+12}
    s_cbranch_vccnz L_miss_{L}
    v_sub_f32 v{vS+2}, v{vM}, v{vS+1}
    """)
    for i in range(7):
        a(f"v_sub_f32 v{vXM+2*i}, v{vXM+2*i}, v{vS+1}")
    a(f"v_exp_f32 v{vS+2}, v{vS+2}")
    for i in range(7):
        a(f"v_exp_f32 v{vXM+2*i}, v{vXM+2*i}")
    a(f"v_mul_f32 v{vS+3}, v{vS+2}, v{vL}")
    for r in range(4):
        a(f"v_mul_f32 v{vB+r}, v{vS+2}, v{vO+r}")
    for i in range(7):
        a(f"v_fmac_f32 v{vS+3}, v{vXM+2*i}, v{vXM+2*i+1}")
    a(f"v_rcp_f32 v{vS+3}, v{vS+3}\ns_waitcnt vmcnt({1 if otouch == 2 else 0})")
    for i in range(7):
        for r in range(0, 4, 2 if pk else 1):
            if pk:
                a(f"v_pk_fma_f32 v[{vB+r}:{vB+r+1}], v[{vXM+2*i}:{vXM+2*i+1}], v[{vXO+4*i+r}:{vXO+4*i+r+1}], "
                  f"v[{vB+r}:{vB+r+1}] op_sel_hi:[0,1,1]")
            else:
                a(f"v_fmac_f32 v{vB+r}, v{vXM+2*i}, v{vXO+4*i+r}")
    for r in range(4):
        a(f"v_mul_f32 v{vB+r}, v{vB+r}, v{vS+3}")
    a(f"""
    v_cmp_u_f32 vcc, v{vB}, v{vB+1}
    v_cmp_u_f32 s[{sNAN}:{sNAN+1}], v{vB+2}, v{vB+3}
    v_cvt_pk_bf16_f32 v{vB}, v{vB}, v{vB+1}
    v_cvt_pk_bf16_f32 v{vB+2}, v{vB+2}, v{vB+3}
    s_nop 0
    s_or_b64 s[{sNAN}:{sNAN+1}], s[{sNAN}:{sNAN+1}], vcc
    s_cbranch_scc1 L_nan_{L}
L_store_{L}:
    {"s_endpgm" if fake == 1 else ""}
    {f"v_lshl_add_u32 v{vA}, v0, 3, s{sP9}" if fake == 2 else ""}
    {f"global_store_dwordx2 v{vA}, v[{vB+2}:{vB+3}], s[{sOUT}:{sOUT+1}] {oflags}" if fake == 2 else ""}
    {"s_endpgm" if fake == 2 else ""}
    global_store_short v{vA}, v{vB}, s[{sOUT}:{sOUT+1}] {oflags}
    global_store_short_d16_hi v{vA}, v{vB}, s[{sOUT}:{sOUT+1}] offset:16 {oflags}
    global_store_short v{vA}, v{vB+2}, s[{sOUT}:{sOUT+1}] offset:32 {oflags}
    global_store_short_d16_hi v{vA}, v{vB+2}, s[{sOUT}:{sOUT+1}] offset:48 {oflags}
    """)
    if stamp:
        a(f"L_notlast_{L}:")
        st(6)
        if diag:
            a(f"s_branch L_diag_{L}")
        else:
            a(f"""
            s_getreg_b32 s{sTMP}, hwreg(HW_REG_XCC_ID)
            s_waitcnt vmcnt(0) lgkmcnt(0)
            s_mov_b32 s{sT+10}, s{sT+8}
            v_mov_b32 v{vS}, s{sT}
            v_mov_b32 v{vS+1}, s{sT+12}
            v_mov_b32 v{vS+2}, s{sTMP}
            {"s_sub_u32 s74, s74, s72" if rate else ""}
            {"s_sub_u32 s70, s70, s68" if rate else ""}
            {"s_add_u32 s%d, s74, s70" % sTK if rate else ""}
            v_mov_b32 v{vS+3}, s{sTK}
L_hold_{L}:
            s_memrealtime s[{sPC}:{sPC+1}]
            s_waitcnt lgkmcnt(0)
            s_sub_u32 s{sPC}, s{sPC}, s{sT}
            s_cmp_lt_u32 s{sPC}, 9000
            s_cbranch_scc1 L_hold_{L}
            s_lshl_b32 s{sTMP}, s2, 4
            s_add_u32 s{sTMP}, s{sTMP}, {WS_STAMP}
            v_mov_b32 v{vT}, s{sTMP}
            {f"s_lshl_b32 s{sTM2}, s2, 8" if trace else ""}
            {f"s_add_u32 s{sTM2}, s{sTM2}, {WS_STAMP + 0x10000}" if trace else ""}
            {f"v_lshl_add_u32 v{vT2}, v0, 2, s{sTM2}" if trace else ""}
            {f"global_store_dword v{vT2}, v{vTR}, s[{sWS}:{sWS+1}]" if trace else ""}
            s_mov_b64 exec, 1
            global_store_dwordx4 v{vT}, {q4(vS)}, s[{sWS}:{sWS+1}]
            s_lshl_b32 s{sTMP}, s2, 5
            s_add_u32 s{sTMP}, s{sTMP}, {WS_STAMP + 0x1000}
            v_mov_b32 v{vT}, s{sTMP}
            """)
            for i in range(7):
                a(f"v_mov_b32 v{vT2}, s{sT+2*i}\nglobal_store_dword v{vT}, v{vT2}, s[{sWS}:{sWS+1}] offset:{4*i}")
    a("s_endpgm")
    a(f"L_nan_{L}:\nv_max3_u32 v{vS}, v{vXM+1}, v{vXM+3}, v{vXM+5}")
    rest = [vXM + 7, vXM + 9, vXM + 11, vXM + 13] + [vXO + i for i in range(28)]
    for i in range(0, len(rest), 2):
        a(f"v_max3_u32 v{vS}, v{vS}, v{rest[i]}, v{rest[i+1]}")
    a(f"""
    v_cmp_eq_u32 vcc, -1, v{vS}
    s_nop 4
    s_cbranch_vccnz L_miss_{L}
    s_branch L_store_{L}
    """)

    hQ, hK = RING0, RING0 + 16
    rnk_init = ""
    if ranked:
        rnk_init = (f"v_lshlrev_b32 v{vT}, 8, v0\nv_add_u32 v{vT}, {WS_RNK}, v{vT}\n"
                    f"global_store_dwordx4 v{vT}, {q4(vO)}, s[{sWS}:{sWS+1}] sc1\nv_add_u32 v{vT}, 0x4000, v{vT}\n"
                    f"global_store_dwordx4 v{vT}, {q4(vO)}, s[{sWS}:{sWS+1}] sc1")
    touch = ""
    if clrp:
        ptrs = [sWS] if clrp == 1 else [sWS, sKT, sVT, sMK]
        touch = "".join(f"s_load_dword s{sD+j}, s[{p}:{p+1}], 0\n" for j, p in enumerate(ptrs)) + "s_waitcnt lgkmcnt(0)"
        if clrp == 3:
            touch += f"\ns_load_dword s{sD}, s[{sWS}:{sWS+1}], 0x40000\ns_waitcnt lgkmcnt(0)"
    a(f"""
L_help_{L}:
    {wsload if ka else ""}
    s_setprio 3
    v_lshl_add_u32 v{vA}, v{vT2}, 4, v{vA}
    v_and_b32 v0, 63, v0
    v_mov_b32 v{vM}, 0xff800000
    v_mov_b32 v{vO}, 0
    v_mov_b32 v{vO+1}, 0
    v_mov_b32 v{vO+2}, 0
    v_mov_b32 v{vO+3}, 0
    v_mov_b32 v{vB}, -1
    v_mov_b32 v{vB+1}, -1
    v_mov_b32 v{vB+2}, -1
    v_mov_b32 v{vB+3}, -1
    s_mov_b32 s{sC}, {f32(c_scale)}
    s_lshl_b32 s{sTMP}, s2, 10
    v_lshl_add_u32 v{vPO}, v0, 4, s{sTMP}
    s_lshl_b32 s{sTMP}, s{sPAIR}, 8
    s_lshl_b32 s{sTM2}, s{sSPL}, 4
    s_add_u32 s{sTM2}, s{sTM2}, s{sTMP}
    s_add_u32 s{sTM2}, s{sTM2}, {WS_ML}
    v_mov_b32 v{vPM}, s{sTM2}
    s_waitcnt lgkmcnt(0)
    {touch}
    global_store_dwordx4 v{vPO}, {q4(vB)}, s[{sWS}:{sWS+1}] sc1
    s_mov_b64 exec, 1
    global_store_dwordx4 v{vPM}, {q4(vB)}, s[{sWS}:{sWS+1}] sc1
    s_mov_b64 exec, -1
    s_cmp_lg_u32 s2, 0
    s_cbranch_scc1 L_noinit_{L}
    v_and_b32 v{vT}, 31, v0
    v_lshlrev_b32 v{vT}, 8, v{vT}
    v_add_u32 v{vT}, {WS_CTR}, v{vT}
    global_store_dword v{vT}, v{vO}, s[{sWS}:{sWS+1}] sc1
    {rnk_init}
    v_mov_b32 v{vN}, 1
    s_waitcnt vmcnt(0)
    global_store_dword v{vO}, v{vN}, s[{sDBG}:{sDBG+1}] sc1
L_noinit_{L}:
    s_and_b32 s{sTM2}, s{sPAIR}, 7
    s_cmp_lg_u32 s{sSPL}, s{sTM2}
    s_cbranch_scc1 L_notree_{L}
    s_lshr_b32 s{sTM2}, s{sPAIR}, 4
    s_lshl_b32 s{sTM2}, s{sTM2}, 1
    v_lshl_add_u32 v{vT}, v{vT2}, 4, s{sTMP}
    v_and_b32 v{vM}, 7, v0
    v_lshl_add_u32 v{vM}, v{vM}, 1, s{sTMP}
    v_lshl_add_u32 v{vM}, v{vT2}, 6, v{vM}
    v_mov_b32 v{vL}, s{sTM2}
    """)
    for i in range(4):
        a(f"global_load_dwordx4 {q4(hQ, i)}, v{vA}, s[{sQ}:{sQ+1}] offset:{64*i}")
    for i in range(4):
        a(f"global_load_dwordx4 {q4(hK, i)}, v{vT}, s[{sKT}:{sKT+1}] offset:{64*i}")
    for r in range(4):
        a(f"global_load_ushort v{vO+r}, v{vM}, s[{sVT}:{sVT+1}] offset:{16*r}")
    a(f"""
    global_load_ushort v{vN}, v{vL}, s[{sMK}:{sMK+1}]
    s_waitcnt vmcnt(0)
    v_mfma_f32_16x16x32_bf16 {q4(vS)}, {q4(hK,0)}, {q4(hQ,0)}, 0
    v_mfma_f32_16x16x32_bf16 {q4(vS)}, {q4(hK,1)}, {q4(hQ,1)}, {q4(vS)}
    v_mfma_f32_16x16x32_bf16 {q4(vS)}, {q4(hK,2)}, {q4(hQ,2)}, {q4(vS)}
    v_mfma_f32_16x16x32_bf16 {q4(vS)}, {q4(hK,3)}, {q4(hQ,3)}, {q4(vS)}
    v_lshlrev_b32 v{vO}, 16, v{vO}
    v_lshlrev_b32 v{vO+1}, 16, v{vO+1}
    v_lshlrev_b32 v{vO+2}, 16, v{vO+2}
    v_lshlrev_b32 v{vO+3}, 16, v{vO+3}
    v_lshlrev_b32 v{vN}, 16, v{vN}
    v_sub_f32 v{vN}, 1.0, v{vN}
    v_mul_f32 v{vN}, {f32(-1e9*math.log2(math.e))}, v{vN}
    s_nop 0
    v_fma_f32 v{vM}, v{vS}, s{sC}, v{vN}
L_notree_{L}:
    {f"v_mov_b32 v{vT}, s{sP9}" if otouch == 3 else ""}
    {f"global_load_dword v{vZ}, v{vT}, s[{sOUT}:{sOUT+1}]" if otouch == 3 else ""}
    v_lshlrev_b32 v{vT}, 2, v0
    v_lshlrev_b32 v{vT2}, 4, v0
    ds_write_b32 v{vT}, v{vM} offset:{LMX + 256*NW}
    ds_write_b128 v{vT2}, {q4(vO)} offset:{LTR}
    s_waitcnt vmcnt(0) lgkmcnt(0)
    """)
    if diag:
        a(f"s_endpgm\nL_diag_{L}:")
        diag_tail(a, L, sDBG, sT, sT + 2 * int(diag[-1]), 66, diag[:-1])
    a(f"L_end_{L}:\ns_endpgm")
    lds = SCL + NW * 128 * T
    return dict(label=label, body=a.text(), grid=NWG, block=64 * (NW + 1), lds=lds, nvgpr=nv, acc=nv,
                nsgpr=102 if table else 76 if stamp or ranked else 52)


if __name__ == "__main__":
    k = gen(NAME + "_kernel")
    sys.stdout.write(final_file(k))
```

```python
import math
import sys

from diag import diag_tail
from gen1 import Asm, NAME, bench_file, f32, final_file, kernel_text, meta
from gen4 import NAMES, parse_map
from gen5 import MAPS

WS_ML = 0x80000
WS_CTR = 0x100000
WS_RNK = 0x110000
WS_STAMP = 0x1000000


def gen(label, amap="l1", flags="nt", stamp=0, sbar=4, diag="", table=0, thr=3, zt=3, skew=2, sx=0, sy=2, sy1=0,
        sy3=0, el=2, early=0, bskip=4, xfl="sc1", clrp=0, otouch=0, oflags="", fake=0, rk="", rlv="64210000", rw=16, rthr=3, kk=-1, klv="88422000", kw=8, ez=0, ethr=3, trace=0, dbuf=0, pk=0, bmask=0, qpos=0, qt=0, pp=0, pz=1, pthr=3, pend=14, rsk=0, ka=0, rate=0, gr=0, glv="l44332210", grd=1, git=14, pr=0, prb=0, pv_="", plv="l44332100", hfirst=0):
    NW, S, T, NB = 4, 8, 64, 4
    NWG = 32 * S
    NR = T // NB
    if diag:
        stamp = 1
    W = parse_map(MAPS.get(amap, amap))
    TB = ["b", "t0", "t1", "t2", "t3", "t4"]
    sW = 76
    rows = [W["r%d" % j] for j in range(4)]
    plain = all(v & (v - 1) == 0 for v in rows) and all(W[n] & sum(rows) == 0 for n in NAMES[:16])
    gx = table or rsk or not (plain and W["r0"] + W["r1"] < 4096)

    def wt(n):
        if table:
            i = NAMES.index(n)
            return f"s{sW + i + (1 if i >= 16 else 0)}"
        return f"{W[n]:#x}"

    c_scale = (128 ** -0.5) * math.log2(math.e)

    vLA = 1
    vZ, vZ2 = 2, 3
    vO = 4
    vM, vL = 8, 9
    vT, vT2, vA, vN = 10, 11, 12, 13
    vPO, vPM = 14, 15
    vS = 16
    vQ = 24
    vMASK = 28
    vB = 32
    vLN = 48
    vLV = 52
    vAD = 56
    RING0 = 64
    vXO, vXM = RING0, RING0 + 28
    vAO, vAM = 48, 55
    vS2 = RING0 + 16 * NB
    vB2 = vS2 + 8
    vTR = vB2 + 16
    nv = vTR + 4 if trace else vB2 + 16 if dbuf else vB2

    def ring(b, i):
        o = RING0 + 16 * b + 4 * i
        return "v[%d:%d]" % (o, o + 3)

    def q4(base, i=0):
        return "v[%d:%d]" % (base + 4 * i, base + 4 * i + 3)

    sQ, sK, sV, sKT, sVT, sMK, sOUT, sDBG, sWS = 4, 6, 8, 10, 12, 14, 16, 18, 20
    sEX = 22
    sD = 24
    sNAN = 28
    sSK = 31
    sPAIR, sSPL, sWAVE, sOFF, sC, sIT, sTMP, sP9 = 32, 33, 34, 35, 36, 37, 38, 39
    sTI, sCLR, sTK, sFLAG, sTM2, sWB = 40, 41, 42, 44, 45, 47
    sRM, sRK, sRC = 43, 46, 66
    sPC = 48
    sCTR = 50
    sT = 52
    L = label
    LMX, LTR, LFO, LFL, SCL = 0, 1280, 2304, 6400, 7424
    a = Asm()

    def st(i):
        if stamp:
            a(f"s_memrealtime s[{sT+2*i}:{sT+2*i+1}]")

    def xor_bits(dst, init, src, names):
        cur = init
        for j, n in enumerate(names):
            if not table and W[n] == 0:
                continue
            a(f"s_bitcmp1_b32 s{src}, {j}")
            if cur is None:
                a(f"s_cselect_b32 s{dst}, {wt(n)}, 0")
            else:
                a(f"s_cselect_b32 s{sTMP}, {wt(n)}, 0\ns_xor_b32 s{dst}, s{cur}, s{sTMP}")
            cur = dst

    def group_off():
        xor_bits(sOFF, sWB, sTI, TB[2:])
        if table:
            a(f"s_and_b32 s{sOFF}, s{sOFF}, 0x7fff00")
        a(f"s_add_u32 s{sTI}, s{sTI}, 1")

    def addr(b):
        if b:
            a(f"s_xor_b32 s{sOFF}, s{sOFF}, s{sSK}")
        if b == 2:
            a(f"s_xor_b32 s{sOFF}, s{sOFF}, {wt('t0')}")
        if gx:
            for i in range(4):
                a(f"v_xor_b32 v{vAD + 4*(b & 1) + i}, s{sOFF}, v{vLN + i}")

    def issue(b):
        for i in range(4):
            if gx:
                a(f"buffer_load_dwordx4 {ring(b,i)}, v{vAD + 4*(b & 1) + i}, s[{sD}:{sD+3}], 0 offen {flags}")
            else:
                o = (i & 1) * W["r0"] + (i >> 1) * W["r1"]
                a(f"buffer_load_dwordx4 {ring(b,i)}, v{vLN}, s[{sD}:{sD+3}], s{sOFF} offen offset:{o} {flags}")

    def lane_rows(dst, bit):
        if not gx and W["r3"] == W["r2"] << 1:
            a(f"v_bfe_u32 v{vZ}, v0, {bit}, 2\nv_lshl_add_u32 v{dst}, v{vZ}, {W['r2'].bit_length() - 1}, v{dst}")
        else:
            for j in range(2):
                a(f"v_bfe_i32 v{vZ}, v0, {bit + j}, 1\nv_and_b32 v{vZ}, {wt('r%d' % (2 + j))}, v{vZ}\n"
                  f"v_xor_b32 v{dst}, v{dst}, v{vZ}")
        if rsk and (table or sy3):
            m23 = f"s{sW+23}" if table else f"{skw(sy3):#x}"
            a(f"v_bfe_i32 v{vZ}, v0, {bit}, 1\nv_and_b32 v{vZ}, {m23}, v{vZ}\nv_bfe_i32 v{vN}, v0, {bit+1}, 1\n"
              f"v_and_b32 v{vZ}, v{vN}, v{vZ}\nv_xor_b32 v{dst}, v{dst}, v{vZ}")
        if gx:
            a(f"v_xor_b32 v{dst+1}, {wt('r0')}, v{dst}\nv_xor_b32 v{dst+2}, {wt('r1')}, v{dst}")
            if rsk and not table:
                a(f"v_xor_b32 v{dst+3}, {W['r1'] ^ skw(sy1):#x}, v{dst+1}")
            else:
                a(f"v_xor_b32 v{dst+3}, {wt('r1')}, v{dst+1}")
            if rsk and table:
                a(f"v_xor_b32 v{dst+3}, s{sW+22}, v{dst+3}")

    def skw(mask):
        v = 0
        for j, n in enumerate("ABC"):
            if mask >> j & 1:
                v ^= W[n]
        return v

    def lane_sum(reg, op):
        a(f"""
        v_mov_b32 v{vT2}, v{reg}
        s_nop 1
        v_permlane16_swap_b32 v{reg}, v{vT2}
        {op} v{reg}, v{reg}, v{vT2}
        v_mov_b32 v{vT2}, v{reg}
        s_nop 1
        v_permlane32_swap_b32 v{reg}, v{vT2}
        {op} v{reg}, v{reg}, v{vT2}
        """)

    wsload = "s_load_dwordx2 s[20:21], s[0:1], 64"
    if ka:
        a(f"s_load_dwordx16 s[4:19], s[0:1], 0\ns_cmp_ge_u32 s2, {NWG}\ns_cbranch_scc1 L_end_{L}")
    else:
        a(f"s_cmp_ge_u32 s2, {NWG}\ns_cbranch_scc1 L_end_{L}\ns_load_dwordx16 s[4:19], s[0:1], 0\n{wsload}")
    st(0)
    a(f"""
    v_lshrrev_b32 v{vN}, 6, v0
    s_and_b32 s{sSPL}, s2, 7
    s_lshr_b32 s{sPAIR}, s2, 3
    v_readfirstlane_b32 s{sWAVE}, v{vN}
    v_bfe_u32 v{vT2}, v0, 4, 2
    s_lshl_b32 s{sP9}, s{sPAIR}, 9
    v_bfe_u32 v{vA}, v0, 3, 1
    v_lshl_add_u32 v{vA}, v{vA}, 8, s{sP9}
    s_cmp_eq_u32 s{sWAVE}, {NW}
    """)
    if hfirst >= 3:
        a(f"""
        s_cbranch_scc0 L_stream_{L}
        s_setprio 3
        v_and_b32 v0, 63, v0
        v_mov_b32 v{vB}, -1
        v_mov_b32 v{vB+1}, -1
        v_mov_b32 v{vB+2}, -1
        v_mov_b32 v{vB+3}, -1
        s_lshl_b32 s{sTMP}, s2, 10
        v_lshl_add_u32 v{vPO}, v0, 4, s{sTMP}
        s_lshl_b32 s{sTMP}, s{sPAIR}, 8
        s_lshl_b32 s{sTM2}, s{sSPL}, 4
        s_add_u32 s{sTM2}, s{sTM2}, s{sTMP}
        s_add_u32 s{sTM2}, s{sTM2}, {WS_ML}
        v_mov_b32 v{vPM}, s{sTM2}
        s_waitcnt lgkmcnt(0)
        global_store_dwordx4 v{vPO}, {q4(vB)}, s[{sWS}:{sWS+1}] sc1
        s_mov_b64 exec, 1
        global_store_dwordx4 v{vPM}, {q4(vB)}, s[{sWS}:{sWS+1}] sc1
        s_mov_b64 exec, -1
        s_branch L_help_{L}
L_stream_{L}:
        """)
    else:
        a(f"s_cbranch_scc1 L_help_{L}")
    if table:
        a(f"""
        s_waitcnt lgkmcnt(0)
        s_load_dwordx16 s[{sW}:{sW+15}], s[{sDBG}:{sDBG+1}], 64
        s_load_dwordx8 s[{sW+16}:{sW+23}], s[{sDBG}:{sDBG+1}], 128
        s_waitcnt lgkmcnt(0)
        """)
        xor_bits(sWB, None, sWAVE, ["w0", "w1"])
        a(f"s_cmp_eq_u32 s{sWAVE}, 3\ns_cselect_b32 s{sTMP}, s{sW+16}, 0\ns_xor_b32 s{sWB}, s{sWB}, s{sTMP}")
    else:
        x3 = W["w0"] ^ W["w1"] ^ (skw(sx) if skew else 0)
        a(f"s_cmp_eq_u32 s{sWAVE}, 1\ns_cselect_b32 s{sWB}, {W['w0']:#x}, 0")
        a(f"s_cmp_eq_u32 s{sWAVE}, 2\ns_cselect_b32 s{sWB}, {W['w1']:#x}, s{sWB}")
        a(f"s_cmp_eq_u32 s{sWAVE}, 3\ns_cselect_b32 s{sWB}, {x3:#x}, s{sWB}")
    xor_bits(sWB, sWB, 2, list("ABCDEFGH"))
    if table:
        a(f"s_and_b32 s{sWB}, s{sWB}, 0x7fff00")
    a(f"""
    v_and_b32 v{vT}, 3, v0
    v_lshlrev_b32 v{vT}, 4, v{vT}
    v_lshl_add_u32 v{vLN}, v{vT2}, 6, v{vT}
    v_add_u32 v{vA}, v{vA}, v{vLN}
    """)
    lane_rows(vLN, 2)
    a(f"""
    s_mov_b32 s{sOFF}, s{sWB}
    s_lshl_b32 s{sTMP}, s{sPAIR}, 23
    s_mov_b32 s{sD+2}, 0x800000
    s_mov_b32 s{sD+3}, 0x20000
    """)
    addr(0)
    if diag.endswith("5"):
        st(5)
    a(f"""
    s_waitcnt lgkmcnt(0)
    s_add_u32 s{sD}, s{sK}, s{sTMP}
    s_addc_u32 s{sD+1}, s{sK+1}, 0
    """)
    st(1)
    if qt:
        a(f"s_load_dword s{sTM2}, s[{sQ}:{sQ+1}], 0")
    if qpos == 0:
        a(f"global_load_dwordx4 {q4(vQ)}, v{vA}, s[{sQ}:{sQ+1}]")
    issue(0)
    if qpos == 1:
        a(f"global_load_dwordx4 {q4(vQ)}, v{vA}, s[{sQ}:{sQ+1}]")
    a(f"s_add_u32 s{sV}, s{sV}, s{sTMP}\ns_addc_u32 s{sV+1}, s{sV+1}, 0")
    if ka:
        a(wsload)
    if table:
        a(f"s_mov_b32 s{sSK}, 0")
        for w, word in ((2, 21),) if rsk else ((2, 21), (1, 22), (3, 23)):
            a(f"s_cmp_eq_u32 s{sWAVE}, {w}\ns_cselect_b32 s{sSK}, s{sW+word}, s{sSK}")
        a(f"s_xor_b32 s{sSK}, s{sSK}, {wt('b')}")
    else:
        a(f"s_mov_b32 s{sSK}, {W['b']:#x}")
        for w, mask in ((2, sy),) if rsk else ((2, sy), (1, sy1), (3, sy3)):
            if skew >= 2 and mask:
                a(f"s_cmp_eq_u32 s{sWAVE}, {w}\ns_cselect_b32 s{sSK}, {W['b'] ^ skw(mask):#x}, s{sSK}")
    for b in range(1, NB):
        addr(b)
        issue(b)
        if qpos == b + 1:
            a(f"global_load_dwordx4 {q4(vQ)}, v{vA}, s[{sQ}:{sQ+1}]")
    a(f"v_and_b32 v{vLV}, 15, v0\nv_lshlrev_b32 v{vLV}, 4, v{vLV}")
    lane_rows(vLV, 4)
    a(f"""
    s_mov_b32 s{sTI}, 1
    s_mov_b32 s{sC}, {f32(c_scale)}
    s_mov_b32 s{sEX}, 0x01010101
    s_mov_b32 s{sEX+1}, 0x01010101
    s_lshl_b32 s{sTMP}, s{sPAIR}, 8
    s_add_u32 s{sTMP}, s{sTMP}, {WS_CTR}
    {"s_waitcnt lgkmcnt(0)" if ka else ""}
    s_add_u32 s{sCTR}, s{sWS}, s{sTMP}
    s_addc_u32 s{sCTR+1}, s{sWS+1}, 0
    s_mov_b32 s{sTK}, 1
    s_lshl_b32 s{sTMP}, s{sWAVE}, 13
    s_add_u32 s{sTMP}, s{sTMP}, {SCL}
    v_bfe_u32 v{vLA}, v0, 3, 1
    v_lshl_add_u32 v{vLA}, v{vLA}, 6, s{sTMP}
    v_lshl_add_u32 v{vLA}, v{vT2}, 4, v{vLA}
    v_lshlrev_b32 v{vZ2}, 2, v0
    v_and_b32 v0, 63, v0
    v_mov_b32 v{vM}, 0xff800000
    v_mov_b32 v{vL}, 0
    v_mov_b32 v{vO}, 0
    v_mov_b32 v{vO+1}, 0
    v_mov_b32 v{vO+2}, 0
    v_mov_b32 v{vO+3}, 0
    v_and_b32 v{vT}, 1, v0
    v_lshlrev_b32 v{vT}, 4, v{vT}
    v_mov_b32 v{vA}, 0xffff
    v_lshlrev_b32 v{vA}, v{vT}, v{vA}
    v_bfe_u32 v{vT}, v0, 1, 2
    """)
    for r in range(4):
        a(f"v_cmp_eq_u32 vcc, {r}, v{vT}\ns_nop 1\nv_cndmask_b32 v{vMASK+r}, 0, v{vA}, vcc")
    steady = 4 * (NB - 1)
    if qpos > 1:
        a(f"s_waitcnt vmcnt({4 * (NB - qpos)})")
    if qt:
        a("s_waitcnt lgkmcnt(0)")
    if stamp:
        a(f"s_waitcnt vmcnt({steady})")
    st(2)

    vchk = [int(x) for x in str(rk).lstrip("r").split("_") if x]
    ranked = bool(vchk) or kk >= 0
    SPREAD = [0x00, 0x01, 0x11, 0x49, 0x55, 0x6d, 0x77, 0x7f, 0xff]

    def rank_ask(tag, it, word):
        a(f"""
        s_cmp_lg_u32 s{sIT}, {it}
        s_cbranch_scc1 L_ra{tag}_{L}
        s_mov_b32 s{sRK}, 7
        s_cmp_eq_u32 s{sFLAG}, 0
        s_cbranch_scc1 L_ra{tag}_{L}
        s_mov_b32 s{sRK}, 1
        s_atomic_add s{sRK}, s[{sRC}:{sRC+1}], {4*word} glc
L_ra{tag}_{L}:
        """)

    def rank_use(tag, it, levels, window, front):
        pats = [((1 << int(c)) - 1) if front else SPREAD[int(c)] for c in str(levels).lstrip("l")]
        lo = sum(p << (8 * i) for i, p in enumerate(pats[:4]))
        hi = sum(p << (8 * i) for i, p in enumerate(pats[4:]))
        rep = 1 if front else sum(1 << (8 * i) for i in range(window // 8))
        a(f"""
        s_cmp_lg_u32 s{sIT}, {it}
        s_cbranch_scc1 L_ru{tag}_{L}
        s_waitcnt lgkmcnt(0)
        s_mov_b32 s{sNAN}, {lo:#x}
        s_mov_b32 s{sNAN+1}, {hi:#x}
        s_lshl_b32 s{sRK}, s{sRK}, 3
        s_lshr_b64 s[{sNAN}:{sNAN+1}], s[{sNAN}:{sNAN+1}], s{sRK}
        s_and_b32 s{sRM}, s{sNAN}, 0xff
        s_mul_i32 s{sRM}, s{sRM}, {rep:#x}
L_ru{tag}_{L}:
        """)

    def paced(tag, level):
        a(f"s_bitcmp0_b32 s{sRM}, 0\ns_cbranch_scc1 L_pc{tag}_{L}\ns_waitcnt vmcnt({level})\nL_pc{tag}_{L}:\n"
          f"s_lshr_b32 s{sRM}, s{sRM}, 1")

    if ranked:
        a(f"""
        s_mov_b32 s{sRM}, 0
        s_mov_b32 s{sFLAG}, 0
        s_lshl_b32 s{sTMP}, s{sPAIR}, 2
        s_add_u32 s{sTMP}, s{sTMP}, s{sWAVE}
        s_lshl_b32 s{sTMP}, s{sTMP}, 8
        s_add_u32 s{sTMP}, s{sTMP}, {WS_RNK}
        s_add_u32 s{sRC}, s{sWS}, s{sTMP}
        s_addc_u32 s{sRC+1}, s{sWS+1}, 0
        """)

    pvs = [int(x) for x in str(pv_).lstrip("r").split("_") if x]
    GOFF = 192
    if pr:
        a(f"s_mov_b32 s{sRM}, 0\ns_mov_b32 s{sRK}, 3")
    if gr:
        a(f"s_mov_b32 s{sRM}, 0\ns_and_b32 s{sCLR}, s{sPAIR}, {256 // gr - 1}\ns_xor_b32 s{sCLR}, s{sCLR}, {min(2, 256 // gr - 1)}\n"
          f"s_or_b32 s{sCLR}, s{sCLR}, s{sWAVE}")

    def grank(b):
        if not gr:
            return
        if b == 0:
            a(f"s_cmp_lg_u32 s{sIT}, {git}\ns_cbranch_scc1 L_gp_{L}\ns_cmp_lg_u32 s{sCLR}, 0\ns_cbranch_scc1 L_gp_{L}\n"
              f"s_atomic_add s{sTK}, s[{sDBG}:{sDBG+1}], {GOFF}\nL_gp_{L}:")
        if b == grd:
            a(f"s_cmp_lg_u32 s{sIT}, {git}\ns_cbranch_scc1 L_gr_{L}\ns_load_dword s{sRK}, s[{sDBG}:{sDBG+1}], {GOFF}\nL_gr_{L}:")

    sTS = 72

    def tr(tag, lo, hi):
        if trace:
            a(f"""
            s_sub_u32 s{sTMP}, s{sIT}, {lo}
            s_cmp_gt_u32 s{sTMP}, {hi - lo}
            s_cbranch_scc1 L_tr{tag}_{L}
            s_waitcnt lgkmcnt(0)
            v_writelane_b32 v{vTR}, s{sTS}, m0
            s_add_u32 m0, m0, 1
            s_memrealtime s[{sTS}:{sTS+1}]
L_tr{tag}_{L}:
            """)

    if trace:
        a(f"s_waitcnt lgkmcnt(0)\ns_mov_b32 s{sTS}, s{sT}\ns_mov_b32 m0, 0\nv_mov_b32 v{vTR}, 0")

    def ktile(b):
        tr(f"k{b}", *((13, 15) if trace == 1 else (0, 6) if trace == 2 else (0, 15) if b == 0 else (99, 99)))
        addr(b)
        a(f"s_waitcnt vmcnt({steady})")
        for i in range(4):
            a(f"v_mfma_f32_16x16x32_bf16 {q4(vB,i)}, {ring(b,i)}, {q4(vQ)}, 0")
        if kk >= 0 or gr or pr:
            paced(f"k{b}", thr)
        if pp and b < pz:
            a(f"s_add_u32 s{sTMP}, s{sIT}, 1\ns_and_b32 s{sTMP}, s{sTMP}, {pp-1}\ns_cbranch_scc1 L_kp{b}_{L}\n"
              f"s_waitcnt vmcnt({pthr})\nL_kp{b}_{L}:")
        if kk < 0 and not gr and not pr and b < zt:
            a(f"s_cmp_lg_u32 s{sIT}, {NR-1}\ns_cbranch_scc1 L_nt{b}_{L}\ns_waitcnt vmcnt({thr})\nL_nt{b}_{L}:")
        issue(b)
        a("s_nop 0")
        sq = vS + 4 * (b & 1)
        for q in range(1, 4):
            for i in range(4):
                d = vB + 4 * i
                a(f"v_add_f32_dpp v{sq+i}, v{d+q}, v{d if q == 1 else sq+i} quad_perm:[{q},{q},{q},{q}] "
                  "row_mask:0xf bank_mask:0xf")
        a(f"""
        v_max3_f32 v{vM}, v{vM}, v{sq}, v{sq+1}
        v_max3_f32 v{vM}, v{vM}, v{sq+2}, v{sq+3}
        s_mov_b64 exec, s[{sEX}:{sEX+1}]
        ds_write_b128 v{vLA}, {q4(sq)} offset:{128*b}
        s_mov_b64 exec, -1
        """)

    def fetch_others():
        for i in range(7):
            a(f"global_load_dwordx2 v[{vXM+2*i}:{vXM+2*i+1}], v{vAM+i}, s[{sWS}:{sWS+1}] {xfl}")
        for i in range(7):
            a(f"global_load_dwordx4 {q4(vXO,i)}, v{vAO+i}, s[{sWS}:{sWS+1}] {xfl}")

    def elect():
        a(f"""
        s_cmp_lg_u32 s{sWAVE}, 0
        s_cbranch_scc1 L_noel_{L}
L_rdy_{L}:
        s_cmp_lg_u32 s{sFLAG}, 0
        s_cbranch_scc1 L_go_{L}
        s_atomic_add s{sFLAG}, s[{sDBG}:{sDBG+1}], 0 glc
        s_waitcnt lgkmcnt(0)
        s_branch L_rdy_{L}
L_go_{L}:
        s_atomic_add s{sTK}, s[{sCTR}:{sCTR+1}], 0 glc
L_noel_{L}:
        """)

    def vtile(b, left=0):
        if left:
            sq = [vS, vS + 4, vS2, vS2 + 4][b]
            if b < 2:
                a("s_waitcnt lgkmcnt(0)")
            if b == 0:
                for j, q in ((1, vS + 4), (2, vS2), (3, vS2 + 4)):
                    a(f"ds_read_b128 {q4(q)}, v{vLA} offset:{128*j}")
            if left == el:
                elect()
        else:
            tr(f"v{b}", *((1, 4) if trace == 1 else (1, 15) if trace == 3 and b == 0 else (99, 99)))
            sq = vS + 4 * (b & 1)
            a(f"s_waitcnt lgkmcnt(0)\nds_read_b128 {q4(vS + 4 * ((b + 1) & 1))}, v{vLA} offset:{128*(b+1)}")
        for r in range(4):
            a(f"v_fma_f32 v{sq+r}, v{sq+r}, s{sC}, -v{vM}")
        for r in range(4):
            a(f"v_exp_f32 v{sq+r}, v{sq+r}")
        if not left:
            addr(b)
        a("s_nop 0")
        for r in range(4):
            a(f"v_add_f32 v{vL}, v{vL}, v{sq+r}")
        for r in range(4):
            a(f"v_cvt_pk_bf16_f32 v{sq+r}, v{sq+r}, v{sq+r}")
        for r in range(4):
            for j in range(4):
                a(f"v_and_b32 v{vB+4*r+j}, v{vMASK+j}, v{sq+r}")
        if left == 1:
            lane_sum(vL, "v_add_f32")
            a(f"ds_write_b32 v{vZ2}, v{vL} offset:{LFL}")
            if early:
                a(f"s_waitcnt lgkmcnt(0)\ns_cmp_lg_u32 s{sTK}, {S-1}\ns_cbranch_scc1 L_nol1_{L}")
                fetch_others()
                a(f"s_waitcnt vmcnt(14)\ns_branch L_l1w_{L}\nL_nol1_{L}:\ns_waitcnt vmcnt(0)\nL_l1w_{L}:")
            else:
                a("s_waitcnt vmcnt(0)")
        else:
            a(f"s_waitcnt vmcnt({4*(left-1) if left else steady})\ns_nop 0")
        for r in range(4):
            a(f"v_mfma_f32_16x16x32_bf16 {q4(vO)}, {ring(b,r)}, {q4(vB,r)}, {q4(vO)}")
        if not left:
            if ranked or pvs or ((gr or pr) and max(str(glv).lstrip("l")) > "4"):
                paced(f"v{b}", rthr)
            if pp and b < pz:
                a(f"s_and_b32 s{sTMP}, s{sIT}, {pp-1}\ns_cbranch_scc1 L_vp{b}_{L}\ns_cmp_gt_u32 s{sIT}, {pend}\n"
                  f"s_cbranch_scc1 L_vp{b}_{L}\ns_waitcnt vmcnt({pthr})\nL_vp{b}_{L}:")
            if b < zt - 4:
                a(f"s_cmp_lg_u32 s{sIT}, 1\ns_cbranch_scc1 L_vz{b}_{L}\ns_waitcnt vmcnt({thr})\nL_vz{b}_{L}:")
            if ez:
                first = NR - 1 - (ez - 1 - (3 - b)) // 4 if ez > 3 - b else NR
                if first < NR:
                    a(f"s_cmp_lt_u32 s{sIT}, {first}\ns_cbranch_scc1 L_ez{b}_{L}\ns_waitcnt vmcnt({ethr})\nL_ez{b}_{L}:")
            issue(b)

    a(f"s_mov_b32 s{sIT}, 0")
    hpos = len(a.lines)
    a(f"L_kloop_{L}:")
    if gr:
        a(f"s_cmp_lg_u32 s{sIT}, {NR-1}\ns_cbranch_scc1 L_gs_{L}\ns_waitcnt lgkmcnt(0)\n"
          f"s_mul_i32 s{sRK}, s{sRK}, {8 * 64 // (gr + 1)}\ns_lshr_b32 s{sRK}, s{sRK}, 6\ns_min_u32 s{sRK}, s{sRK}, 7\nL_gs_{L}:")
        rank_use("g", NR - 1, glv, 8, True)
    if kk >= 0:
        a(f"s_cmp_lg_u32 s{sIT}, 8\ns_cbranch_scc1 L_kfl_{L}\ns_load_dword s{sFLAG}, s[{sDBG}:{sDBG+1}], 0\n"
          f"s_waitcnt lgkmcnt(0)\nL_kfl_{L}:")
        rank_use("k", NR - 1, klv, kw, True)
        rank_ask("k", kk, 3)
    a(f"""
    s_cmp_lg_u32 s{sIT}, {NR-1}
    s_cbranch_scc1 L_kgo_{L}
    s_mov_b32 s{sD}, s{sV}
    s_mov_b32 s{sD+1}, s{sV+1}
    s_mov_b32 s{sTI}, 0
    {"" if pr else f"s_load_dword s{sFLAG}, s[{sDBG}:{sDBG+1}], 0"}
    """)
    for i in range(4 if gx else 1):
        a(f"v_mov_b32 v{vLN+i}, v{vLV+i}")
    a(f"L_kgo_{L}:")
    if rate:
        a(f"s_cmp_lg_u32 s{sIT}, 6\ns_cbranch_scc1 L_rs1_{L}\ns_memrealtime s[72:73]\nL_rs1_{L}:")
        a(f"s_cmp_lg_u32 s{sIT}, 14\ns_cbranch_scc1 L_rs2_{L}\ns_memrealtime s[74:75]\nL_rs2_{L}:")
    group_off()
    assert sbar
    for b in range(NB):
        if pr and b == 0:
            a(f"""
            s_cmp_lg_u32 s{sIT}, 8
            s_cbranch_scc1 L_p0_{L}
            s_load_dword s{sFLAG}, s[{sDBG}:{sDBG+1}], 0
L_p0_{L}:
            s_xor_b32 s{sTMP}, s{sIT}, {NR-1}
            s_or_b32 s{sTMP}, s{sTMP}, s{sWAVE}
            s_cbranch_scc1 L_p1_{L}
            s_waitcnt lgkmcnt(0)
            v_mov_b32 v{vT}, s{sRK}
            ds_write_b32 v{vZ2}, v{vT} offset:{LFL}
            s_waitcnt lgkmcnt(0)
L_p1_{L}:
            """)
        if b % sbar == 0:
            a(f"s_cmp_lt_u32 s{sIT}, {bskip}\ns_cbranch_scc1 L_knb{b}_{L}")
            if bmask:
                a(f"s_and_b32 s{sTMP}, s{sIT}, {bmask}\ns_cbranch_scc1 L_knb{b}_{L}")
            a(f"s_barrier\nL_knb{b}_{L}:")
        if pr and b == 0:
            a(f"""
            s_cmp_lg_u32 s{sIT}, {NR-1}
            s_cbranch_scc1 L_p2_{L}
            v_mov_b32 v{vT}, 0
            ds_read_b32 v{vT}, v{vT} offset:{LFL}
            s_waitcnt lgkmcnt(0)
            v_readfirstlane_b32 s{sRK}, v{vT}
L_p2_{L}:
            """)
            rank_use("p", NR - 1, glv, 8, True)
        if pr and b == prb:
            a(f"""
            s_xor_b32 s{sTMP}, s{sIT}, {git}
            s_or_b32 s{sTMP}, s{sTMP}, s{sWAVE}
            s_cbranch_scc1 L_p3_{L}
            s_waitcnt lgkmcnt(0)
            s_cmp_eq_u32 s{sFLAG}, 0
            s_cbranch_scc1 L_p3_{L}
            s_mov_b32 s{sRK}, 1
            s_atomic_add s{sRK}, s[{sCTR}:{sCTR+1}], 4 glc
L_p3_{L}:
            """)
        grank(b)
        ktile(b)
    a(f"""
    v_add_u32 v{vLA}, {128*NB}, v{vLA}
    s_add_u32 s{sIT}, s{sIT}, 1
    s_cmp_lt_u32 s{sIT}, {NR}
    s_cbranch_scc1 L_kloop_{L}
    v_subrev_u32 v{vLA}, {128*T}, v{vLA}
    """)
    lane_sum(vM, "v_max_f32")
    a(f"""
    v_mul_f32 v{vT2}, s{sC}, v{vM}
    v_lshlrev_b32 v{vT}, 2, v0
    v_lshlrev_b32 v{vZ}, 4, v0
    v_mov_b32_dpp v{vM}, v{vT2} row_newbcast:0 row_mask:0xf bank_mask:0x3
    s_nop 1
    v_mov_b32_dpp v{vM}, v{vT2} row_newbcast:8 row_mask:0xf bank_mask:0xc
    ds_write_b32 v{vZ2}, v{vM} offset:{LMX}
    s_waitcnt lgkmcnt(0)
    s_barrier
    """)
    for i in range(NW + 1):
        a(f"ds_read_b32 v{vB+i}, v{vT} offset:{LMX + 256*i}")
    a(f"""
    ds_read_b128 {q4(vB,2)}, v{vZ} offset:{LTR}
    ds_read_b128 {q4(vS)}, v{vLA}
    s_mov_b32 s{sIT}, 1
    s_cmp_lg_u32 s{sWAVE}, 0
    s_waitcnt lgkmcnt({0 if trace else 1})
    v_max3_f32 v{vM}, v{vB}, v{vB+1}, v{vB+2}
    v_max3_f32 v{vM}, v{vM}, v{vB+3}, v{vB+4}
    s_cbranch_scc1 L_vloop_{L}
    v_sub_f32 v{vT}, v{vB+4}, v{vM}
    v_exp_f32 v{vT}, v{vT}
    v_cmp_gt_u32 vcc, 16, v0
    v_mul_f32 v{vO}, v{vT}, v{vB+8}
    v_mul_f32 v{vO+1}, v{vT}, v{vB+9}
    v_mul_f32 v{vO+2}, v{vT}, v{vB+10}
    v_mul_f32 v{vO+3}, v{vT}, v{vB+11}
    v_cndmask_b32 v{vL}, 0, v{vT}, vcc
L_vloop_{L}:
    """)
    if rate:
        a(f"s_cmp_lg_u32 s{sIT}, 4\ns_cbranch_scc1 L_rs3_{L}\ns_memrealtime s[68:69]\nL_rs3_{L}:")
        a(f"s_cmp_lg_u32 s{sIT}, 12\ns_cbranch_scc1 L_rs4_{L}\ns_memrealtime s[70:71]\nL_rs4_{L}:")
    for n, it in enumerate(vchk):
        rank_use(f"v{n}", it + 1, rlv, rw, False)
        rank_ask(f"v{n}", it, n)
    group_off()
    for b in range(NB):
        for n, it in enumerate(pvs if b == 0 else []):
            a(f"""
            s_xor_b32 s{sTMP}, s{sIT}, {it+1}
            s_or_b32 s{sTMP}, s{sTMP}, s{sWAVE}
            s_cbranch_scc1 L_q1{n}_{L}
            s_waitcnt lgkmcnt(0)
            v_mov_b32 v{vT}, s{sRK}
            ds_write_b32 v{vZ2}, v{vT} offset:{LFL}
            s_waitcnt lgkmcnt(0)
L_q1{n}_{L}:
            """)
        if b % sbar == 0:
            if bmask:
                a(f"s_and_b32 s{sTMP}, s{sIT}, {bmask}\ns_cbranch_scc1 L_vnb{b}_{L}\ns_barrier\nL_vnb{b}_{L}:")
            else:
                a("s_barrier")
        for n, it in enumerate(pvs if b == 0 else []):
            a(f"""
            s_cmp_lg_u32 s{sIT}, {it+1}
            s_cbranch_scc1 L_q2{n}_{L}
            v_mov_b32 v{vT}, 0
            ds_read_b32 v{vT}, v{vT} offset:{LFL}
            s_waitcnt lgkmcnt(0)
            v_readfirstlane_b32 s{sRK}, v{vT}
L_q2{n}_{L}:
            """)
            rank_use(f"q{n}", it + 1, plv, 8, True)
            a(f"""
            s_xor_b32 s{sTMP}, s{sIT}, {it}
            s_or_b32 s{sTMP}, s{sTMP}, s{sWAVE}
            s_cbranch_scc1 L_q3{n}_{L}
            s_mov_b32 s{sRK}, 7
            s_cmp_eq_u32 s{sFLAG}, 0
            s_cbranch_scc1 L_q3{n}_{L}
            s_mov_b32 s{sRK}, 1
            s_atomic_add s{sRK}, s[{sCTR}:{sCTR+1}], {8 + 4*n} glc
L_q3{n}_{L}:
            """)
        vtile(b)
    a(f"""
    v_add_u32 v{vLA}, {128*NB}, v{vLA}
    s_add_u32 s{sIT}, s{sIT}, 1
    s_cmp_lt_u32 s{sIT}, {NR}
    s_cbranch_scc1 L_vloop_{L}
    """)
    quads = [vS, vS + 4, vS2, vS2 + 4]

    def probs(sq):
        for r in range(4):
            a(f"v_fma_f32 v{sq+r}, v{sq+r}, s{sC}, -v{vM}")
        for r in range(4):
            a(f"v_exp_f32 v{sq+r}, v{sq+r}")
        a("s_nop 0")
        for r in range(4):
            a(f"v_add_f32 v{vL}, v{vL}, v{sq+r}")
        for r in range(4):
            a(f"v_cvt_pk_bf16_f32 v{sq+r}, v{sq+r}, v{sq+r}")

    def frags(dst, sq):
        for r in range(4):
            for j in range(4):
                a(f"v_and_b32 v{dst+4*r+j}, v{vMASK+j}, v{sq+r}")

    def pv(b, src):
        a(f"s_waitcnt vmcnt({4*(3-b)})")
        for r in range(4):
            a(f"v_mfma_f32_16x16x32_bf16 {q4(vO)}, {ring(b,r)}, {q4(src,r)}, {q4(vO)}")

    if dbuf:
        for j in range(1, 4):
            a(f"ds_read_b128 {q4(quads[j])}, v{vLA} offset:{128*j}")
        a("s_waitcnt lgkmcnt(0)" if trace else "s_waitcnt lgkmcnt(3)")
        probs(quads[0])
        frags(vB, quads[0])
        a("s_waitcnt lgkmcnt(0)")
        probs(quads[1])
        frags(vB2, quads[1])
        pv(0, vB)
        if el == 3:
            elect()
        probs(quads[2])
        probs(quads[3])
        frags(vB, quads[2])
        lane_sum(vL, "v_add_f32")
        a(f"ds_write_b32 v{vZ2}, v{vL} offset:{LFL}")
    else:
        vtile(0, 4)
    a(f"""
    s_lshl_b32 s{sTMP}, s2, 10
    v_lshl_add_u32 v{vPO}, v0, 4, s{sTMP}
    s_lshl_b32 s{sTMP}, s{sPAIR}, 8
    s_lshl_b32 s{sTM2}, s{sSPL}, 4
    s_add_u32 s{sTMP}, s{sTMP}, s{sTM2}
    s_add_u32 s{sTMP}, s{sTMP}, {WS_ML}
    v_and_b32 v{vPM}, 8, v0
    v_add_u32 v{vPM}, s{sTMP}, v{vPM}
    """)
    for i in range(7):
        a(f"v_xor_b32 v{vAO+i}, {(i+1) << 10:#x}, v{vPO}\nv_xor_b32 v{vAM+i}, {(i+1) << 4:#x}, v{vPM}")
    a(f"""
    v_bfe_u32 v{vT}, v0, 3, 1
    v_lshl_add_u32 v{vA}, v{vT}, 8, s{sP9}
    v_lshrrev_b32 v{vT}, 4, v0
    v_lshl_add_u32 v{vA}, v{vT}, 6, v{vA}
    v_and_b32 v{vT}, 7, v0
    v_lshl_add_u32 v{vA}, v{vT}, 1, v{vA}
    v_lshlrev_b32 v{vN}, 2, v{vZ2}
    """)
    if otouch == 1:
        a(f"s_load_dword s{sTM2}, s[{sOUT}:{sOUT+1}], s{sP9}")
    if dbuf:
        assert not early
        pv(1, vB2)
        if el == 2:
            elect()
        frags(vB2, quads[3])
        pv(2, vB)
        if el == 1:
            elect()
        pv(3, vB2)
    else:
        for b in range(1, NB):
            vtile(b, NB - b)
    st(3)
    a(f"""
    s_cmp_eq_u32 s{sWAVE}, 0
    s_cbranch_scc1 L_w0_{L}
    s_nop 5
    ds_write_b128 v{vN}, {q4(vO)} offset:{LFO}
    s_waitcnt lgkmcnt(0)
    s_barrier
    s_endpgm
L_w0_{L}:
    """)
    if el == 0:
        elect()
    if not early:
        a(f"s_waitcnt lgkmcnt(0)\ns_cmp_lg_u32 s{sTK}, {S-1}\ns_cbranch_scc1 L_nol1_{L}")
        fetch_others()
        if otouch == 2:
            a(f"global_load_ushort v{vT}, v{vA}, s[{sOUT}:{sOUT+1}]")
        a(f"L_nol1_{L}:")
    a("s_barrier")
    for i in range(1, NW):
        a(f"ds_read_b32 v{vS+i}, v{vZ2} offset:{LFL + 256*i}")
    for i in range(1, NW):
        a(f"ds_read_b128 {q4(vB,i)}, v{vN} offset:{LFO + 1024*i}")
    a(f"""
    v_min_u32 v{vM}, -2, v{vM}
    s_cmp_eq_u32 s{sTK}, {S-1}
    s_waitcnt lgkmcnt(0)
    v_add_f32 v{vS+1}, v{vS+1}, v{vS+2}
    v_add_f32 v{vL}, v{vL}, v{vS+3}
    """)
    for r in range(4):
        a(f"v_add_f32 v{vB+4+r}, v{vB+4+r}, v{vB+8+r}\nv_add_f32 v{vO+r}, v{vO+r}, v{vB+12+r}")
    for r in range(4):
        a(f"v_add_f32 v{vO+r}, v{vO+r}, v{vB+4+r}")
    a(f"v_add_f32 v{vL}, v{vL}, v{vS+1}")
    st(4)
    a(f"s_cbranch_scc1 L_fin_{L}")
    for r in (vO, vO + 1, vO + 2, vO + 3, vL):
        a(f"v_min_u32 v{r}, -2, v{r}")
    a(f"""
    global_store_dwordx4 v{vPO}, {q4(vO)}, s[{sWS}:{sWS+1}] sc1
    s_mov_b64 exec, 0x101
    global_store_dwordx2 v{vPM}, v[{vM}:{vL}], s[{sWS}:{sWS+1}] sc1
    {f"s_mov_b64 exec, -1" if stamp else ""}
    {f"s_branch L_notlast_{L}" if stamp else "s_endpgm"}
L_miss_{L}:
    """)
    fetch_others()
    if otouch == 2:
        a(f"global_load_ushort v{vT}, v{vA}, s[{sOUT}:{sOUT+1}]")
    a(f"""
L_fin_{L}:
    s_waitcnt vmcnt({8 if otouch == 2 else 7})
    v_max3_u32 v{vS}, v{vXM}, v{vXM+2}, v{vXM+4}
    v_max3_u32 v{vS}, v{vS}, v{vXM+6}, v{vXM+8}
    v_max3_u32 v{vS}, v{vS}, v{vXM+10}, v{vXM+12}
    v_cmp_eq_u32 vcc, -1, v{vS}
    v_max3_f32 v{vS+1}, v{vM}, v{vXM}, v{vXM+2}
    v_max3_f32 v{vS+1}, v{vS+1}, v{vXM+4}, v{vXM+6}
    v_max3_f32 v{vS+1}, v{vS+1}, v{vXM+8}, v{vXM+10}
    v_max_f32 v{vS+1}, v{vS+1}, v{vXM+12}
    s_cbranch_vccnz L_miss_{L}
    v_sub_f32 v{vS+2}, v{vM}, v{vS+1}
    """)
    for i in range(7):
        a(f"v_sub_f32 v{vXM+2*i}, v{vXM+2*i}, v{vS+1}")
    a(f"v_exp_f32 v{vS+2}, v{vS+2}")
    for i in range(7):
        a(f"v_exp_f32 v{vXM+2*i}, v{vXM+2*i}")
    a(f"v_mul_f32 v{vS+3}, v{vS+2}, v{vL}")
    for r in range(4):
        a(f"v_mul_f32 v{vB+r}, v{vS+2}, v{vO+r}")
    for i in range(7):
        a(f"v_fmac_f32 v{vS+3}, v{vXM+2*i}, v{vXM+2*i+1}")
    a(f"v_rcp_f32 v{vS+3}, v{vS+3}\ns_waitcnt vmcnt({1 if otouch == 2 else 0})")
    for i in range(7):
        for r in range(0, 4, 2 if pk else 1):
            if pk:
                a(f"v_pk_fma_f32 v[{vB+r}:{vB+r+1}], v[{vXM+2*i}:{vXM+2*i+1}], v[{vXO+4*i+r}:{vXO+4*i+r+1}], "
                  f"v[{vB+r}:{vB+r+1}] op_sel_hi:[0,1,1]")
            else:
                a(f"v_fmac_f32 v{vB+r}, v{vXM+2*i}, v{vXO+4*i+r}")
    for r in range(4):
        a(f"v_mul_f32 v{vB+r}, v{vB+r}, v{vS+3}")
    a(f"""
    v_cmp_u_f32 vcc, v{vB}, v{vB+1}
    v_cmp_u_f32 s[{sNAN}:{sNAN+1}], v{vB+2}, v{vB+3}
    v_cvt_pk_bf16_f32 v{vB}, v{vB}, v{vB+1}
    v_cvt_pk_bf16_f32 v{vB+2}, v{vB+2}, v{vB+3}
    s_nop 0
    s_or_b64 s[{sNAN}:{sNAN+1}], s[{sNAN}:{sNAN+1}], vcc
    s_cbranch_scc1 L_nan_{L}
L_store_{L}:
    {"s_endpgm" if fake == 1 else ""}
    {f"v_lshl_add_u32 v{vA}, v0, 3, s{sP9}" if fake == 2 else ""}
    {f"global_store_dwordx2 v{vA}, v[{vB+2}:{vB+3}], s[{sOUT}:{sOUT+1}] {oflags}" if fake == 2 else ""}
    {"s_endpgm" if fake == 2 else ""}
    global_store_short v{vA}, v{vB}, s[{sOUT}:{sOUT+1}] {oflags}
    global_store_short_d16_hi v{vA}, v{vB}, s[{sOUT}:{sOUT+1}] offset:16 {oflags}
    global_store_short v{vA}, v{vB+2}, s[{sOUT}:{sOUT+1}] offset:32 {oflags}
    global_store_short_d16_hi v{vA}, v{vB+2}, s[{sOUT}:{sOUT+1}] offset:48 {oflags}
    """)
    if stamp:
        a(f"L_notlast_{L}:")
        st(6)
        if diag:
            a(f"s_branch L_diag_{L}")
        else:
            a(f"""
            s_getreg_b32 s{sTMP}, hwreg(HW_REG_XCC_ID)
            s_waitcnt vmcnt(0) lgkmcnt(0)
            s_mov_b32 s{sT+10}, s{sT+8}
            v_mov_b32 v{vS}, s{sT}
            v_mov_b32 v{vS+1}, s{sT+12}
            v_mov_b32 v{vS+2}, s{sTMP}
            {"s_sub_u32 s74, s74, s72" if rate else ""}
            {"s_sub_u32 s70, s70, s68" if rate else ""}
            {"s_add_u32 s%d, s74, s70" % sTK if rate else ""}
            v_mov_b32 v{vS+3}, s{sTK}
L_hold_{L}:
            s_memrealtime s[{sPC}:{sPC+1}]
            s_waitcnt lgkmcnt(0)
            s_sub_u32 s{sPC}, s{sPC}, s{sT}
            s_cmp_lt_u32 s{sPC}, 9000
            s_cbranch_scc1 L_hold_{L}
            s_lshl_b32 s{sTMP}, s2, 4
            s_add_u32 s{sTMP}, s{sTMP}, {WS_STAMP}
            v_mov_b32 v{vT}, s{sTMP}
            {f"s_lshl_b32 s{sTM2}, s2, 8" if trace else ""}
            {f"s_add_u32 s{sTM2}, s{sTM2}, {WS_STAMP + 0x10000}" if trace else ""}
            {f"v_lshl_add_u32 v{vT2}, v0, 2, s{sTM2}" if trace else ""}
            {f"global_store_dword v{vT2}, v{vTR}, s[{sWS}:{sWS+1}]" if trace else ""}
            s_mov_b64 exec, 1
            global_store_dwordx4 v{vT}, {q4(vS)}, s[{sWS}:{sWS+1}]
            s_lshl_b32 s{sTMP}, s2, 5
            s_add_u32 s{sTMP}, s{sTMP}, {WS_STAMP + 0x1000}
            v_mov_b32 v{vT}, s{sTMP}
            """)
            for i in range(7):
                a(f"v_mov_b32 v{vT2}, s{sT+2*i}\nglobal_store_dword v{vT}, v{vT2}, s[{sWS}:{sWS+1}] offset:{4*i}")
    a("s_endpgm")
    a(f"L_nan_{L}:\nv_max3_u32 v{vS}, v{vXM+1}, v{vXM+3}, v{vXM+5}")
    rest = [vXM + 7, vXM + 9, vXM + 11, vXM + 13] + [vXO + i for i in range(28)]
    for i in range(0, len(rest), 2):
        a(f"v_max3_u32 v{vS}, v{vS}, v{rest[i]}, v{rest[i+1]}")
    a(f"""
    v_cmp_eq_u32 vcc, -1, v{vS}
    s_nop 4
    s_cbranch_vccnz L_miss_{L}
    s_branch L_store_{L}
    """)

    hstart = len(a.lines)
    hQ, hK = RING0, RING0 + 16
    rnk_init = ""
    if ranked:
        rnk_init = (f"v_lshlrev_b32 v{vT}, 8, v0\nv_add_u32 v{vT}, {WS_RNK}, v{vT}\n"
                    f"global_store_dwordx4 v{vT}, {q4(vO)}, s[{sWS}:{sWS+1}] sc1\nv_add_u32 v{vT}, 0x4000, v{vT}\n"
                    f"global_store_dwordx4 v{vT}, {q4(vO)}, s[{sWS}:{sWS+1}] sc1")
    touch = ""
    if clrp:
        ptrs = [sWS] if clrp == 1 else [sWS, sKT, sVT, sMK]
        touch = "".join(f"s_load_dword s{sD+j}, s[{p}:{p+1}], 0\n" for j, p in enumerate(ptrs)) + "s_waitcnt lgkmcnt(0)"
        if clrp == 3:
            touch += f"\ns_load_dword s{sD}, s[{sWS}:{sWS+1}], 0x40000\ns_waitcnt lgkmcnt(0)"
    a(f"""
L_help_{L}:
    """)
    if hfirst >= 3:
        a(f"""
        v_lshl_add_u32 v{vA}, v{vT2}, 4, v{vA}
        v_mov_b32 v{vM}, 0xff800000
        v_mov_b32 v{vO}, 0
        v_mov_b32 v{vO+1}, 0
        v_mov_b32 v{vO+2}, 0
        v_mov_b32 v{vO+3}, 0
        s_mov_b32 s{sC}, {f32(c_scale)}
        """)
    else:
        a(f"""
    {wsload if ka else ""}
    s_setprio 3
    v_lshl_add_u32 v{vA}, v{vT2}, 4, v{vA}
    v_and_b32 v0, 63, v0
    v_mov_b32 v{vM}, 0xff800000
    v_mov_b32 v{vO}, 0
    v_mov_b32 v{vO+1}, 0
    v_mov_b32 v{vO+2}, 0
    v_mov_b32 v{vO+3}, 0
    v_mov_b32 v{vB}, -1
    v_mov_b32 v{vB+1}, -1
    v_mov_b32 v{vB+2}, -1
    v_mov_b32 v{vB+3}, -1
    s_mov_b32 s{sC}, {f32(c_scale)}
    s_lshl_b32 s{sTMP}, s2, 10
    v_lshl_add_u32 v{vPO}, v0, 4, s{sTMP}
    s_lshl_b32 s{sTMP}, s{sPAIR}, 8
    s_lshl_b32 s{sTM2}, s{sSPL}, 4
    s_add_u32 s{sTM2}, s{sTM2}, s{sTMP}
    s_add_u32 s{sTM2}, s{sTM2}, {WS_ML}
    v_mov_b32 v{vPM}, s{sTM2}
    s_waitcnt lgkmcnt(0)
    {touch}
    global_store_dwordx4 v{vPO}, {q4(vB)}, s[{sWS}:{sWS+1}] sc1
    s_mov_b64 exec, 1
    global_store_dwordx4 v{vPM}, {q4(vB)}, s[{sWS}:{sWS+1}] sc1
    s_mov_b64 exec, -1
    """)
    a(f"""
    s_cmp_lg_u32 s2, 0
    s_cbranch_scc1 L_noinit_{L}
    v_and_b32 v{vT}, 31, v0
    v_lshlrev_b32 v{vT}, 8, v{vT}
    v_add_u32 v{vT}, {WS_CTR}, v{vT}
    {f"global_store_dwordx4 v{vT}, v[{vO}:{vO+3}], s[{sWS}:{sWS+1}] sc1" if pr else f"global_store_dword v{vT}, v{vO}, s[{sWS}:{sWS+1}] sc1"}
    {rnk_init}
    v_mov_b32 v{vN}, 1
    s_waitcnt vmcnt(0)
    global_store_dword v{vO}, v{vN}, s[{sDBG}:{sDBG+1}] sc1
L_noinit_{L}:
    s_and_b32 s{sTM2}, s{sPAIR}, 7
    s_cmp_lg_u32 s{sSPL}, s{sTM2}
    s_cbranch_scc1 L_notree_{L}
    s_lshr_b32 s{sTM2}, s{sPAIR}, 4
    s_lshl_b32 s{sTM2}, s{sTM2}, 1
    v_lshl_add_u32 v{vT}, v{vT2}, 4, s{sTMP}
    v_and_b32 v{vM}, 7, v0
    v_lshl_add_u32 v{vM}, v{vM}, 1, s{sTMP}
    v_lshl_add_u32 v{vM}, v{vT2}, 6, v{vM}
    v_mov_b32 v{vL}, s{sTM2}
    """)
    for i in range(4):
        a(f"global_load_dwordx4 {q4(hQ, i)}, v{vA}, s[{sQ}:{sQ+1}] offset:{64*i}")
    for i in range(4):
        a(f"global_load_dwordx4 {q4(hK, i)}, v{vT}, s[{sKT}:{sKT+1}] offset:{64*i}")
    for r in range(4):
        a(f"global_load_ushort v{vO+r}, v{vM}, s[{sVT}:{sVT+1}] offset:{16*r}")
    a(f"""
    global_load_ushort v{vN}, v{vL}, s[{sMK}:{sMK+1}]
    s_waitcnt vmcnt(0)
    v_mfma_f32_16x16x32_bf16 {q4(vS)}, {q4(hK,0)}, {q4(hQ,0)}, 0
    v_mfma_f32_16x16x32_bf16 {q4(vS)}, {q4(hK,1)}, {q4(hQ,1)}, {q4(vS)}
    v_mfma_f32_16x16x32_bf16 {q4(vS)}, {q4(hK,2)}, {q4(hQ,2)}, {q4(vS)}
    v_mfma_f32_16x16x32_bf16 {q4(vS)}, {q4(hK,3)}, {q4(hQ,3)}, {q4(vS)}
    v_lshlrev_b32 v{vO}, 16, v{vO}
    v_lshlrev_b32 v{vO+1}, 16, v{vO+1}
    v_lshlrev_b32 v{vO+2}, 16, v{vO+2}
    v_lshlrev_b32 v{vO+3}, 16, v{vO+3}
    v_lshlrev_b32 v{vN}, 16, v{vN}
    v_sub_f32 v{vN}, 1.0, v{vN}
    v_mul_f32 v{vN}, {f32(-1e9*math.log2(math.e))}, v{vN}
    s_nop 0
    v_fma_f32 v{vM}, v{vS}, s{sC}, v{vN}
L_notree_{L}:
    {f"v_mov_b32 v{vT}, s{sP9}" if otouch == 3 else ""}
    {f"global_load_dword v{vZ}, v{vT}, s[{sOUT}:{sOUT+1}]" if otouch == 3 else ""}
    v_lshlrev_b32 v{vT}, 2, v0
    v_lshlrev_b32 v{vT2}, 4, v0
    ds_write_b32 v{vT}, v{vM} offset:{LMX + 256*NW}
    ds_write_b128 v{vT2}, {q4(vO)} offset:{LTR}
    s_waitcnt vmcnt(0) lgkmcnt(0)
    """)
    if hfirst:
        a(f"s_branch L_end_{L}" if hfirst in (1, 4) else "s_endpgm")
        blk = a.lines[hstart:]
        del a.lines[hstart:]
        a.lines[hpos:hpos] = [f"    s_branch L_kloop_{L}"] + blk
    if diag:
        a(f"s_endpgm\nL_diag_{L}:")
        diag_tail(a, L, sDBG, sT, sT + 2 * int(diag[-1]), 66, diag[:-1])
    a(f"L_end_{L}:\ns_endpgm")
    lds = SCL + NW * 128 * T
    return dict(label=label, body=a.text(), grid=NWG, block=64 * (NW + 1), lds=lds, nvgpr=nv, acc=nv,
                nsgpr=102 if table else 76 if stamp or ranked else 52)


if __name__ == "__main__":
    k = gen(NAME + "_kernel")
    sys.stdout.write(final_file(k))
```

```python
import re
import sys

import gen6
from gen1 import HEADER, NAME, kernel_text

DOC = """;
;
;
;
"""

NOTES = [
    (r"s_cmp_eq_u32 s34, 1\b", "xor map: wave and workgroup terms of the tile offset"),
    (r"v_and_b32 v10, 3, v0", "K lane offsets: row (lane >> 2) & 3, bytes 64 * (lane >> 4) + 16 * (lane & 3)"),
    (r"buffer_load_dwordx4 v\[64:67\]", "first ring of K tiles and the Q fragment"),
    (r"v_and_b32 v52, 15, v0", "V lane offsets: row lane >> 4, bytes 16 * (lane & 15)"),
    (r"v_and_b32 v10, 1, v0", "masks selecting bf16 element (lane & 7) of a B fragment"),
    (r"L_help:", "helper wave: mark the slot, set up the counters (workgroup 0), score the tree token"),
    (r"L_kloop:", "phase 1: 16 rounds of 4 K tiles; the last round refills the ring from V"),
    (r"s_cmp_lg_u32 s37, 8\b", "round 8: fetch the ready flag; round 15: wave 0 shares the progress rank through LDS"),
    (r"L_p2:", "s43: one bit per tile whose refill waits for older loads first; early workgroups get more of them"),
    (r"L_rup:", "round 14: wave 0 asks how many workgroups of the pair got here before"),
    (r"v_subrev_u32 v1, 8192, v1", "workgroup-wide maximum per head, in log2 units"),
    (r"v_sub_f32 v10, v36, v8", "wave 0: tree-token term"),
    (r"L_vloop:", "phase 2: 15 rounds of 4 V tiles with refill"),
    (r"ds_read_b128 v\[128:131\]", "last round: no refill"),
    (r"s_lshl_b32 s38, s2, 10", "exchange and output addresses"),
    (r"L_rdy:", "wave 0: arrival ticket, once the counters are known to be zeroed"),
    (r"s_cmp_eq_u32 s34, 0\b", "sum over the waves through LDS"),
    (r"L_w0:", "wave 0: the holder of ticket 7 starts reading the other partials"),
    (r"v_min_u32 v4, -2, v4", "publish; published words never equal the marker"),
    (r"L_miss:", "some word still held the marker: read again"),
    (r"L_fin:", "merge the eight partials and normalise"),
    (r"L_nan:", "a NaN result is either a word that has not arrived yet or a NaN in the data"),
]


def build(**kw):
    k = gen6.gen(NAME + "_kernel", **kw)
    body = re.sub(r"(L_\w+?)_" + NAME + "_kernel", r"\1", k["body"])
    out, todo = [], list(NOTES)
    for ln in body.split("\n"):
        if not ln.strip():
            continue
        ln = ln.rstrip()
        if todo and re.match(r"\s*" + todo[0][0], ln):
            out.append("    ; " + todo.pop(0)[1])
        out.append(ln)
    assert not todo, todo
    k["body"] = "\n".join(out) + "\n"
    return (HEADER + f"; @launch grid=({k['grid']},1,1) block=({k['block']},1,1) lds={k['lds']}\n" + DOC
            + '.amdgcn_target "amdgcn-amd-amdhsa--gfx950"\n' + kernel_text(k))


if __name__ == "__main__":
    sys.stdout.write(build(amap="l2", qpos=1, pr=1, glv="l44433321", hfirst=1, rnd=1))
```

```python
import math
import sys

from diag import diag_tail
from gen1 import Asm, NAME, bench_file, f32, final_file, kernel_text, meta
from gen4 import NAMES, parse_map
from gen5 import MAPS

WS_ML = 0x80000
WS_CTR = 0x100000
WS_RNK = 0x110000
WS_STAMP = 0x1000000


def gen(label, amap="l1", flags="nt", stamp=0, sbar=4, diag="", table=0, thr=3, zt=3, skew=2, sx=0, sy=2, sy1=0,
        sy3=0, el=2, early=0, bskip=4, xfl="sc1", clrp=0, otouch=0, oflags="", fake=0, rk="", rlv="64210000", rw=16, rthr=3, kk=-1, klv="88422000", kw=8, ez=0, ethr=3, trace=0, dbuf=0, pk=0, bmask=0, qpos=0, qt=0, pp=0, pz=1, pthr=3, pend=14, rsk=0, ka=0, rate=0, gr=0, glv="l44332210", grd=1, git=14, pr=0, prb=0, pv_="", plv="l44332100", hfirst=0, qm="", qx="B", pk2=0, pl2="l33322100", pf=0, pfn=32, ub=0, um="u14", ue=0, rnd=0):
    NW, S, T, NB = 4, 8, 64, 4
    NWG = 32 * S
    NR = T // NB
    if diag:
        stamp = 1
    W = parse_map(MAPS.get(amap, amap))
    TB = ["b", "t0", "t1", "t2", "t3", "t4"]
    sW = 76
    rows = [W["r%d" % j] for j in range(4)]
    plain = all(v & (v - 1) == 0 for v in rows) and all(W[n] & sum(rows) == 0 for n in NAMES[:16])
    gx = table or rsk or not (plain and W["r0"] + W["r1"] < 4096)

    def wt(n):
        if table:
            i = NAMES.index(n)
            return f"s{sW + i + (1 if i >= 16 else 0)}"
        return f"{W[n]:#x}"

    c_scale = math.log2(math.e) * (1.0 if rnd else 128 ** -0.5)
    sSC = 3

    vLA = 1
    vZ, vZ2 = 2, 3
    vO = 4
    vM, vL = 8, 9
    vT, vT2, vA, vN = 10, 11, 12, 13
    vPO, vPM = 14, 15
    vS = 16
    vQ = 24
    vMASK = 28
    vB = 32
    vLN = 48
    vLV = 52
    vAD = 56
    RING0 = 64
    vXO, vXM = RING0, RING0 + 28
    vAO, vAM = 48, 55
    vS2 = RING0 + 16 * NB
    vB2 = vS2 + 8
    vTR = vB2 + 16
    nv = vTR + 4 if trace else vB2 + 16 if dbuf else vB2

    def ring(b, i):
        o = RING0 + 16 * b + 4 * i
        return "v[%d:%d]" % (o, o + 3)

    def q4(base, i=0):
        return "v[%d:%d]" % (base + 4 * i, base + 4 * i + 3)

    sQ, sK, sV, sKT, sVT, sMK, sOUT, sDBG, sWS = 4, 6, 8, 10, 12, 14, 16, 18, 20
    sEX = 22
    sD = 24
    sNAN = 28
    sSK = 31
    sPAIR, sSPL, sWAVE, sOFF, sC, sIT, sTMP, sP9 = 32, 33, 34, 35, 36, 37, 38, 39
    sTI, sCLR, sTK, sFLAG, sTM2, sWB = 40, 41, 42, 44, 45, 47
    sRM, sRK, sRC = 43, 46, 66
    sPC = 48
    sCTR = 50
    sT = 52
    L = label
    LMX, LTR, LFO, LFL, SCL = 0, 1280, 2304, 6400, 7424
    a = Asm()

    def st(i):
        if stamp:
            a(f"s_memrealtime s[{sT+2*i}:{sT+2*i+1}]")

    def xor_bits(dst, init, src, names):
        cur = init
        for j, n in enumerate(names):
            if not table and W[n] == 0:
                continue
            a(f"s_bitcmp1_b32 s{src}, {j}")
            if cur is None:
                a(f"s_cselect_b32 s{dst}, {wt(n)}, 0")
            else:
                a(f"s_cselect_b32 s{sTMP}, {wt(n)}, 0\ns_xor_b32 s{dst}, s{cur}, s{sTMP}")
            cur = dst

    qms = [sum(1 << "DEFGH".index(c) for c in x if c != "0") for x in str(qm).split("_")] if qm else []
    sQM = 68
    sUB = 30

    def group_off():
        if qms:
            for j in range(4):
                op = f"s{sQM + j}" if qms[j] else wt(TB[2 + j])
                a(f"s_bitcmp1_b32 s{sTI}, {j}\ns_cselect_b32 s{sTMP}, {op}, 0\n"
                  f"s_xor_b32 s{sOFF}, s{sOFF if j else sWB}, s{sTMP}")
        else:
            xor_bits(sOFF, sWB, sTI, TB[2:])
        if ub:
            a(f"s_cmp_lt_u32 s{sTI}, {ub}\ns_cselect_b32 s{sTMP}, s{sUB}, 0\ns_xor_b32 s{sOFF}, s{sOFF}, s{sTMP}")
        if ue:
            a(f"s_cmp_ge_u32 s{sTI}, {NR - ue}\ns_cselect_b32 s{sTMP}, s{sUB}, 0\ns_xor_b32 s{sOFF}, s{sOFF}, s{sTMP}")
        if table:
            a(f"s_and_b32 s{sOFF}, s{sOFF}, 0x7fff00")
        a(f"s_add_u32 s{sTI}, s{sTI}, 1")

    def addr(b):
        if b:
            a(f"s_xor_b32 s{sOFF}, s{sOFF}, s{sSK}")
        if b == 2:
            a(f"s_xor_b32 s{sOFF}, s{sOFF}, {wt('t0')}")
        if gx:
            for i in range(4):
                a(f"v_xor_b32 v{vAD + 4*(b & 1) + i}, s{sOFF}, v{vLN + i}")

    def issue(b):
        for i in range(4):
            if gx:
                a(f"buffer_load_dwordx4 {ring(b,i)}, v{vAD + 4*(b & 1) + i}, s[{sD}:{sD+3}], 0 offen {flags}")
            else:
                o = (i & 1) * W["r0"] + (i >> 1) * W["r1"]
                a(f"buffer_load_dwordx4 {ring(b,i)}, v{vLN}, s[{sD}:{sD+3}], s{sOFF} offen offset:{o} {flags}")

    def lane_rows(dst, bit):
        if not gx and W["r3"] == W["r2"] << 1:
            a(f"v_bfe_u32 v{vZ}, v0, {bit}, 2\nv_lshl_add_u32 v{dst}, v{vZ}, {W['r2'].bit_length() - 1}, v{dst}")
        else:
            for j in range(2):
                a(f"v_bfe_i32 v{vZ}, v0, {bit + j}, 1\nv_and_b32 v{vZ}, {wt('r%d' % (2 + j))}, v{vZ}\n"
                  f"v_xor_b32 v{dst}, v{dst}, v{vZ}")
        if rsk and (table or sy3):
            m23 = f"s{sW+23}" if table else f"{skw(sy3):#x}"
            a(f"v_bfe_i32 v{vZ}, v0, {bit}, 1\nv_and_b32 v{vZ}, {m23}, v{vZ}\nv_bfe_i32 v{vN}, v0, {bit+1}, 1\n"
              f"v_and_b32 v{vZ}, v{vN}, v{vZ}\nv_xor_b32 v{dst}, v{dst}, v{vZ}")
        if gx:
            a(f"v_xor_b32 v{dst+1}, {wt('r0')}, v{dst}\nv_xor_b32 v{dst+2}, {wt('r1')}, v{dst}")
            if rsk and not table:
                a(f"v_xor_b32 v{dst+3}, {W['r1'] ^ skw(sy1):#x}, v{dst+1}")
            else:
                a(f"v_xor_b32 v{dst+3}, {wt('r1')}, v{dst+1}")
            if rsk and table:
                a(f"v_xor_b32 v{dst+3}, s{sW+22}, v{dst+3}")

    def skw(mask):
        v = 0
        for j, n in enumerate("ABC"):
            if mask >> j & 1:
                v ^= W[n]
        return v

    def lane_sum(reg, op):
        a(f"""
        v_mov_b32 v{vT2}, v{reg}
        s_nop 1
        v_permlane16_swap_b32 v{reg}, v{vT2}
        {op} v{reg}, v{reg}, v{vT2}
        v_mov_b32 v{vT2}, v{reg}
        s_nop 1
        v_permlane32_swap_b32 v{reg}, v{vT2}
        {op} v{reg}, v{reg}, v{vT2}
        """)

    wsload = "s_load_dwordx2 s[20:21], s[0:1], 64"
    if ka:
        a(f"s_load_dwordx16 s[4:19], s[0:1], 0\ns_cmp_ge_u32 s2, {NWG}\ns_cbranch_scc1 L_end_{L}")
    else:
        a(f"s_cmp_ge_u32 s2, {NWG}\ns_cbranch_scc1 L_end_{L}\ns_load_dwordx16 s[4:19], s[0:1], 0\n{wsload}")
    st(0)
    a(f"""
    v_lshrrev_b32 v{vN}, 6, v0
    s_and_b32 s{sSPL}, s2, 7
    s_lshr_b32 s{sPAIR}, s2, 3
    v_readfirstlane_b32 s{sWAVE}, v{vN}
    v_bfe_u32 v{vT2}, v0, 4, 2
    s_lshl_b32 s{sP9}, s{sPAIR}, 9
    v_bfe_u32 v{vA}, v0, 3, 1
    v_lshl_add_u32 v{vA}, v{vA}, 8, s{sP9}
    s_cmp_eq_u32 s{sWAVE}, {NW}
    """)
    if hfirst >= 3:
        a(f"""
        s_cbranch_scc0 L_stream_{L}
        s_setprio 3
        v_and_b32 v0, 63, v0
        v_mov_b32 v{vB}, -1
        v_mov_b32 v{vB+1}, -1
        v_mov_b32 v{vB+2}, -1
        v_mov_b32 v{vB+3}, -1
        s_lshl_b32 s{sTMP}, s2, 10
        v_lshl_add_u32 v{vPO}, v0, 4, s{sTMP}
        s_lshl_b32 s{sTMP}, s{sPAIR}, 8
        s_lshl_b32 s{sTM2}, s{sSPL}, 4
        s_add_u32 s{sTM2}, s{sTM2}, s{sTMP}
        s_add_u32 s{sTM2}, s{sTM2}, {WS_ML}
        v_mov_b32 v{vPM}, s{sTM2}
        s_waitcnt lgkmcnt(0)
        global_store_dwordx4 v{vPO}, {q4(vB)}, s[{sWS}:{sWS+1}] sc1
        s_mov_b64 exec, 1
        global_store_dwordx4 v{vPM}, {q4(vB)}, s[{sWS}:{sWS+1}] sc1
        s_mov_b64 exec, -1
        s_branch L_help_{L}
L_stream_{L}:
        """)
    else:
        a(f"s_cbranch_scc1 L_help_{L}")
    if table:
        a(f"""
        s_waitcnt lgkmcnt(0)
        s_load_dwordx16 s[{sW}:{sW+15}], s[{sDBG}:{sDBG+1}], 64
        s_load_dwordx8 s[{sW+16}:{sW+23}], s[{sDBG}:{sDBG+1}], 128
        s_waitcnt lgkmcnt(0)
        """)
        xor_bits(sWB, None, sWAVE, ["w0", "w1"])
        a(f"s_cmp_eq_u32 s{sWAVE}, 3\ns_cselect_b32 s{sTMP}, s{sW+16}, 0\ns_xor_b32 s{sWB}, s{sWB}, s{sTMP}")
    else:
        x3 = W["w0"] ^ W["w1"] ^ (skw(sx) if skew else 0)
        a(f"s_cmp_eq_u32 s{sWAVE}, 1\ns_cselect_b32 s{sWB}, {W['w0']:#x}, 0")
        a(f"s_cmp_eq_u32 s{sWAVE}, 2\ns_cselect_b32 s{sWB}, {W['w1']:#x}, s{sWB}")
        a(f"s_cmp_eq_u32 s{sWAVE}, 3\ns_cselect_b32 s{sWB}, {x3:#x}, s{sWB}")
    xor_bits(sWB, sWB, 2, list("ABCDEFGH"))
    if table:
        a(f"s_and_b32 s{sWB}, s{sWB}, 0x7fff00")
    a(f"""
    v_and_b32 v{vT}, 3, v0
    v_lshlrev_b32 v{vT}, 4, v{vT}
    v_lshl_add_u32 v{vLN}, v{vT2}, 6, v{vT}
    v_add_u32 v{vA}, v{vA}, v{vLN}
    """)
    lane_rows(vLN, 2)
    ub_code = f"s_mov_b32 s{sOFF}, s{sWB}"
    if ub or ue:
        m0, m1 = (skw(int(c)) for c in str(um).lstrip("u"))
        ub_code = (f"s_bitcmp1_b32 s{sWAVE}, 0\ns_cselect_b32 s{sUB}, {m0:#x}, 0\ns_bitcmp1_b32 s{sWAVE}, 1\n"
                   f"s_cselect_b32 s{sTMP}, {m1:#x}, 0\ns_xor_b32 s{sUB}, s{sUB}, s{sTMP}\n"
                   + (f"s_xor_b32 s{sOFF}, s{sWB}, s{sUB}" if ub else ub_code))
    a(f"""
    {ub_code}
    s_lshl_b32 s{sTMP}, s{sPAIR}, 23
    s_mov_b32 s{sD+2}, 0x800000
    s_mov_b32 s{sD+3}, 0x20000
    """)
    addr(0)
    if diag.endswith("5"):
        st(5)
    a(f"""
    s_waitcnt lgkmcnt(0)
    s_add_u32 s{sD}, s{sK}, s{sTMP}
    s_addc_u32 s{sD+1}, s{sK+1}, 0
    """)
    st(1)
    if qt:
        a(f"s_load_dword s{sTM2}, s[{sQ}:{sQ+1}], 0")
    if qpos == 0:
        a(f"global_load_dwordx4 {q4(vQ)}, v{vA}, s[{sQ}:{sQ+1}]")
    issue(0)
    if qpos == 1:
        a(f"global_load_dwordx4 {q4(vQ)}, v{vA}, s[{sQ}:{sQ+1}]")
    a(f"s_add_u32 s{sV}, s{sV}, s{sTMP}\ns_addc_u32 s{sV+1}, s{sV+1}, 0")
    if ka:
        a(wsload)
    if table:
        a(f"s_mov_b32 s{sSK}, 0")
        for w, word in ((2, 21),) if rsk else ((2, 21), (1, 22), (3, 23)):
            a(f"s_cmp_eq_u32 s{sWAVE}, {w}\ns_cselect_b32 s{sSK}, s{sW+word}, s{sSK}")
        a(f"s_xor_b32 s{sSK}, s{sSK}, {wt('b')}")
    else:
        a(f"s_mov_b32 s{sSK}, {W['b']:#x}")
        for w, mask in ((2, sy),) if rsk else ((2, sy), (1, sy1), (3, sy3)):
            if skew >= 2 and mask:
                a(f"s_cmp_eq_u32 s{sWAVE}, {w}\ns_cselect_b32 s{sSK}, {W['b'] ^ skw(mask):#x}, s{sSK}")
    for b in range(1, NB):
        addr(b)
        issue(b)
        if qpos == b + 1:
            a(f"global_load_dwordx4 {q4(vQ)}, v{vA}, s[{sQ}:{sQ+1}]")
    a(f"v_and_b32 v{vLV}, 15, v0\nv_lshlrev_b32 v{vLV}, 4, v{vLV}")
    lane_rows(vLV, 4)
    a(f"""
    s_mov_b32 s{sTI}, 1
    {f"s_mov_b32 s{sSC}, {f32(128 ** -0.5)}" if rnd else ""}
    s_mov_b32 s{sC}, {f32(c_scale)}
    s_mov_b32 s{sEX}, 0x01010101
    s_mov_b32 s{sEX+1}, 0x01010101
    s_lshl_b32 s{sTMP}, s{sPAIR}, 8
    s_add_u32 s{sTMP}, s{sTMP}, {WS_CTR}
    {"s_waitcnt lgkmcnt(0)" if ka else ""}
    s_add_u32 s{sCTR}, s{sWS}, s{sTMP}
    s_addc_u32 s{sCTR+1}, s{sWS+1}, 0
    s_mov_b32 s{sTK}, 1
    s_lshl_b32 s{sTMP}, s{sWAVE}, 13
    s_add_u32 s{sTMP}, s{sTMP}, {SCL}
    v_bfe_u32 v{vLA}, v0, 3, 1
    v_lshl_add_u32 v{vLA}, v{vLA}, 6, s{sTMP}
    v_lshl_add_u32 v{vLA}, v{vT2}, 4, v{vLA}
    v_lshlrev_b32 v{vZ2}, 2, v0
    v_and_b32 v0, 63, v0
    v_mov_b32 v{vM}, 0xff800000
    v_mov_b32 v{vL}, 0
    v_mov_b32 v{vO}, 0
    v_mov_b32 v{vO+1}, 0
    v_mov_b32 v{vO+2}, 0
    v_mov_b32 v{vO+3}, 0
    v_and_b32 v{vT}, 1, v0
    v_lshlrev_b32 v{vT}, 4, v{vT}
    v_mov_b32 v{vA}, 0xffff
    v_lshlrev_b32 v{vA}, v{vT}, v{vA}
    v_bfe_u32 v{vT}, v0, 1, 2
    """)
    for r in range(4):
        a(f"v_cmp_eq_u32 vcc, {r}, v{vT}\ns_nop 1\nv_cndmask_b32 v{vMASK+r}, 0, v{vA}, vcc")
    for j, m in enumerate(qms):
        if m:
            x = 0
            for n in str(qx).split("_"):
                x ^= W[n]
            a(f"s_and_b32 s{sTMP}, s{sPAIR}, {m}\ns_bcnt1_i32_b32 s{sTMP}, s{sTMP}\ns_bitcmp1_b32 s{sTMP}, 0\n"
              f"s_cselect_b32 s{sQM + j}, {x:#x}, 0\ns_xor_b32 s{sQM + j}, s{sQM + j}, {wt(TB[2 + j])}")
    steady = 4 * (NB - 1)
    if qpos > 1:
        a(f"s_waitcnt vmcnt({4 * (NB - qpos)})")
    if qt:
        a("s_waitcnt lgkmcnt(0)")
    if stamp:
        a(f"s_waitcnt vmcnt({steady})")
    st(2)

    vchk = [int(x) for x in str(rk).lstrip("r").split("_") if x]
    ranked = bool(vchk) or kk >= 0
    SPREAD = [0x00, 0x01, 0x11, 0x49, 0x55, 0x6d, 0x77, 0x7f, 0xff]

    def rank_ask(tag, it, word):
        a(f"""
        s_cmp_lg_u32 s{sIT}, {it}
        s_cbranch_scc1 L_ra{tag}_{L}
        s_mov_b32 s{sRK}, 7
        s_cmp_eq_u32 s{sFLAG}, 0
        s_cbranch_scc1 L_ra{tag}_{L}
        s_mov_b32 s{sRK}, 1
        s_atomic_add s{sRK}, s[{sRC}:{sRC+1}], {4*word} glc
L_ra{tag}_{L}:
        """)

    def rank_use(tag, it, levels, window, front):
        pats = [((1 << int(c)) - 1) if front else SPREAD[int(c)] for c in str(levels).lstrip("l")]
        lo = sum(p << (8 * i) for i, p in enumerate(pats[:4]))
        hi = sum(p << (8 * i) for i, p in enumerate(pats[4:]))
        rep = 1 if front else sum(1 << (8 * i) for i in range(window // 8))
        a(f"""
        s_cmp_lg_u32 s{sIT}, {it}
        s_cbranch_scc1 L_ru{tag}_{L}
        s_waitcnt lgkmcnt(0)
        s_mov_b32 s{sNAN}, {lo:#x}
        s_mov_b32 s{sNAN+1}, {hi:#x}
        s_lshl_b32 s{sRK}, s{sRK}, 3
        s_lshr_b64 s[{sNAN}:{sNAN+1}], s[{sNAN}:{sNAN+1}], s{sRK}
        s_and_b32 s{sRM}, s{sNAN}, 0xff
        s_mul_i32 s{sRM}, s{sRM}, {rep:#x}
L_ru{tag}_{L}:
        """)

    def paced(tag, level):
        a(f"s_bitcmp0_b32 s{sRM}, 0\ns_cbranch_scc1 L_pc{tag}_{L}\ns_waitcnt vmcnt({level})\nL_pc{tag}_{L}:\n"
          f"s_lshr_b32 s{sRM}, s{sRM}, 1")

    if ranked:
        a(f"""
        s_mov_b32 s{sRM}, 0
        s_mov_b32 s{sFLAG}, 0
        s_lshl_b32 s{sTMP}, s{sPAIR}, 2
        s_add_u32 s{sTMP}, s{sTMP}, s{sWAVE}
        s_lshl_b32 s{sTMP}, s{sTMP}, 8
        s_add_u32 s{sTMP}, s{sTMP}, {WS_RNK}
        s_add_u32 s{sRC}, s{sWS}, s{sTMP}
        s_addc_u32 s{sRC+1}, s{sWS+1}, 0
        """)

    pvs = [int(x) for x in str(pv_).lstrip("r").split("_") if x]
    GOFF = 192
    if pr:
        a(f"s_mov_b32 s{sRM}, 0\ns_mov_b32 s{sRK}, 3")
    if gr:
        a(f"s_mov_b32 s{sRM}, 0\ns_and_b32 s{sCLR}, s{sPAIR}, {256 // gr - 1}\ns_xor_b32 s{sCLR}, s{sCLR}, {min(2, 256 // gr - 1)}\n"
          f"s_or_b32 s{sCLR}, s{sCLR}, s{sWAVE}")

    def grank(b):
        if not gr:
            return
        if b == 0:
            a(f"s_cmp_lg_u32 s{sIT}, {git}\ns_cbranch_scc1 L_gp_{L}\ns_cmp_lg_u32 s{sCLR}, 0\ns_cbranch_scc1 L_gp_{L}\n"
              f"s_atomic_add s{sTK}, s[{sDBG}:{sDBG+1}], {GOFF}\nL_gp_{L}:")
        if b == grd:
            a(f"s_cmp_lg_u32 s{sIT}, {git}\ns_cbranch_scc1 L_gr_{L}\ns_load_dword s{sRK}, s[{sDBG}:{sDBG+1}], {GOFF}\nL_gr_{L}:")

    sTS = 72

    def tr(tag, lo, hi):
        if trace:
            a(f"""
            s_sub_u32 s{sTMP}, s{sIT}, {lo}
            s_cmp_gt_u32 s{sTMP}, {hi - lo}
            s_cbranch_scc1 L_tr{tag}_{L}
            s_waitcnt lgkmcnt(0)
            v_writelane_b32 v{vTR}, s{sTS}, m0
            s_add_u32 m0, m0, 1
            s_memrealtime s[{sTS}:{sTS+1}]
L_tr{tag}_{L}:
            """)

    if trace:
        a(f"s_waitcnt lgkmcnt(0)\ns_mov_b32 s{sTS}, s{sT}\ns_mov_b32 m0, 0\nv_mov_b32 v{vTR}, 0")

    def ktile(b):
        tr(f"k{b}", *((13, 15) if trace == 1 else (0, 6) if trace == 2 else (0, 15) if b == 0 else (99, 99)))
        addr(b)
        a(f"s_waitcnt vmcnt({steady})")
        for i in range(4):
            a(f"v_mfma_f32_16x16x32_bf16 {q4(vB,i)}, {ring(b,i)}, {q4(vQ)}, 0")
        if kk >= 0 or gr or pr:
            paced(f"k{b}", thr)
        if pp and b < pz:
            a(f"s_add_u32 s{sTMP}, s{sIT}, 1\ns_and_b32 s{sTMP}, s{sTMP}, {pp-1}\ns_cbranch_scc1 L_kp{b}_{L}\n"
              f"s_waitcnt vmcnt({pthr})\nL_kp{b}_{L}:")
        if kk < 0 and not gr and not pr and b < zt:
            a(f"s_cmp_lg_u32 s{sIT}, {NR-1}\ns_cbranch_scc1 L_nt{b}_{L}\ns_waitcnt vmcnt({thr})\nL_nt{b}_{L}:")
        issue(b)
        a("s_nop 0")
        sq = vS + 4 * (b & 1)
        for q in range(1, 4):
            for i in range(4):
                d = vB + 4 * i
                a(f"v_add_f32_dpp v{sq+i}, v{d+q}, v{d if q == 1 else sq+i} quad_perm:[{q},{q},{q},{q}] "
                  "row_mask:0xf bank_mask:0xf")
        if rnd:
            for step in range(2):
                a(f"v_cvt_pk_bf16_f32 v{sq+1}, v{sq}, v{sq+1}\nv_cvt_pk_bf16_f32 v{sq+3}, v{sq+2}, v{sq+3}")
                for i in (0, 2):
                    a(f"v_lshlrev_b32 v{sq+i}, 16, v{sq+i+1}\nv_and_b32 v{sq+i+1}, 0xffff0000, v{sq+i+1}")
                if step == 0:
                    for i in range(4):
                        a(f"v_mul_f32 v{sq+i}, s{sSC}, v{sq+i}")
        a(f"""
        v_max3_f32 v{vM}, v{vM}, v{sq}, v{sq+1}
        v_max3_f32 v{vM}, v{vM}, v{sq+2}, v{sq+3}
        s_mov_b64 exec, s[{sEX}:{sEX+1}]
        ds_write_b128 v{vLA}, {q4(sq)} offset:{128*b}
        s_mov_b64 exec, -1
        """)

    def fetch_others():
        for i in range(7):
            a(f"global_load_dwordx2 v[{vXM+2*i}:{vXM+2*i+1}], v{vAM+i}, s[{sWS}:{sWS+1}] {xfl}")
        for i in range(7):
            a(f"global_load_dwordx4 {q4(vXO,i)}, v{vAO+i}, s[{sWS}:{sWS+1}] {xfl}")

    def elect():
        a(f"""
        s_cmp_lg_u32 s{sWAVE}, 0
        s_cbranch_scc1 L_noel_{L}
L_rdy_{L}:
        s_cmp_lg_u32 s{sFLAG}, 0
        s_cbranch_scc1 L_go_{L}
        s_atomic_add s{sFLAG}, s[{sDBG}:{sDBG+1}], 0 glc
        s_waitcnt lgkmcnt(0)
        s_branch L_rdy_{L}
L_go_{L}:
        s_atomic_add s{sTK}, s[{sCTR}:{sCTR+1}], 0 glc
L_noel_{L}:
        """)

    def vtile(b, left=0):
        if left:
            sq = [vS, vS + 4, vS2, vS2 + 4][b]
            if b < 2:
                a("s_waitcnt lgkmcnt(0)")
            if b == 0:
                for j, q in ((1, vS + 4), (2, vS2), (3, vS2 + 4)):
                    a(f"ds_read_b128 {q4(q)}, v{vLA} offset:{128*j}")
            if left == el:
                elect()
        else:
            tr(f"v{b}", *((1, 4) if trace == 1 else (1, 15) if trace == 3 and b == 0 else (99, 99)))
            sq = vS + 4 * (b & 1)
            a(f"s_waitcnt lgkmcnt(0)\nds_read_b128 {q4(vS + 4 * ((b + 1) & 1))}, v{vLA} offset:{128*(b+1)}")
        for r in range(4):
            a(f"v_fma_f32 v{sq+r}, v{sq+r}, s{sC}, -v{vM}")
        for r in range(4):
            a(f"v_exp_f32 v{sq+r}, v{sq+r}")
        if not left:
            addr(b)
        a("s_nop 0")
        for r in range(4):
            a(f"v_add_f32 v{vL}, v{vL}, v{sq+r}")
        for r in range(4):
            a(f"v_cvt_pk_bf16_f32 v{sq+r}, v{sq+r}, v{sq+r}")
        for r in range(4):
            for j in range(4):
                a(f"v_and_b32 v{vB+4*r+j}, v{vMASK+j}, v{sq+r}")
        if left == 1:
            lane_sum(vL, "v_add_f32")
            a(f"ds_write_b32 v{vZ2}, v{vL} offset:{LFL}")
            if early:
                a(f"s_waitcnt lgkmcnt(0)\ns_cmp_lg_u32 s{sTK}, {S-1}\ns_cbranch_scc1 L_nol1_{L}")
                fetch_others()
                a(f"s_waitcnt vmcnt(14)\ns_branch L_l1w_{L}\nL_nol1_{L}:\ns_waitcnt vmcnt(0)\nL_l1w_{L}:")
            else:
                a("s_waitcnt vmcnt(0)")
        else:
            a(f"s_waitcnt vmcnt({4*(left-1) if left else steady})\ns_nop 0")
        for r in range(4):
            a(f"v_mfma_f32_16x16x32_bf16 {q4(vO)}, {ring(b,r)}, {q4(vB,r)}, {q4(vO)}")
        if not left:
            if ranked or pvs or ((gr or pr) and max(str(glv).lstrip("l")) > "4"):
                paced(f"v{b}", rthr)
            if pp and b < pz:
                a(f"s_and_b32 s{sTMP}, s{sIT}, {pp-1}\ns_cbranch_scc1 L_vp{b}_{L}\ns_cmp_gt_u32 s{sIT}, {pend}\n"
                  f"s_cbranch_scc1 L_vp{b}_{L}\ns_waitcnt vmcnt({pthr})\nL_vp{b}_{L}:")
            if b < zt - 4:
                a(f"s_cmp_lg_u32 s{sIT}, 1\ns_cbranch_scc1 L_vz{b}_{L}\ns_waitcnt vmcnt({thr})\nL_vz{b}_{L}:")
            if ez:
                first = NR - 1 - (ez - 1 - (3 - b)) // 4 if ez > 3 - b else NR
                if first < NR:
                    a(f"s_cmp_lt_u32 s{sIT}, {first}\ns_cbranch_scc1 L_ez{b}_{L}\ns_waitcnt vmcnt({ethr})\nL_ez{b}_{L}:")
            issue(b)

    a(f"s_mov_b32 s{sIT}, 0")
    hpos = len(a.lines)
    a(f"L_kloop_{L}:")
    if gr:
        a(f"s_cmp_lg_u32 s{sIT}, {NR-1}\ns_cbranch_scc1 L_gs_{L}\ns_waitcnt lgkmcnt(0)\n"
          f"s_mul_i32 s{sRK}, s{sRK}, {8 * 64 // (gr + 1)}\ns_lshr_b32 s{sRK}, s{sRK}, 6\ns_min_u32 s{sRK}, s{sRK}, 7\nL_gs_{L}:")
        rank_use("g", NR - 1, glv, 8, True)
    if kk >= 0:
        a(f"s_cmp_lg_u32 s{sIT}, 8\ns_cbranch_scc1 L_kfl_{L}\ns_load_dword s{sFLAG}, s[{sDBG}:{sDBG+1}], 0\n"
          f"s_waitcnt lgkmcnt(0)\nL_kfl_{L}:")
        rank_use("k", NR - 1, klv, kw, True)
        rank_ask("k", kk, 3)
    a(f"""
    s_cmp_lg_u32 s{sIT}, {NR-1}
    s_cbranch_scc1 L_kgo_{L}
    s_mov_b32 s{sD}, s{sV}
    s_mov_b32 s{sD+1}, s{sV+1}
    s_mov_b32 s{sTI}, 0
    {"" if pr else f"s_load_dword s{sFLAG}, s[{sDBG}:{sDBG+1}], 0"}
    """)
    for i in range(4 if gx else 1):
        a(f"v_mov_b32 v{vLN+i}, v{vLV+i}")
    a(f"L_kgo_{L}:")
    if rate:
        a(f"s_cmp_lg_u32 s{sIT}, 6\ns_cbranch_scc1 L_rs1_{L}\ns_memrealtime s[72:73]\nL_rs1_{L}:")
        a(f"s_cmp_lg_u32 s{sIT}, 14\ns_cbranch_scc1 L_rs2_{L}\ns_memrealtime s[74:75]\nL_rs2_{L}:")
    group_off()
    assert sbar
    for b in range(NB):
        if pr and b == 0:
            a(f"""
            s_cmp_lg_u32 s{sIT}, {min(8, pk2 - 1) if pk2 else 8}
            s_cbranch_scc1 L_p0_{L}
            s_load_dword s{sFLAG}, s[{sDBG}:{sDBG+1}], 0
L_p0_{L}:
            s_xor_b32 s{sTMP}, s{sIT}, {NR-1}
            s_or_b32 s{sTMP}, s{sTMP}, s{sWAVE}
            s_cbranch_scc1 L_p1_{L}
            s_waitcnt lgkmcnt(0)
            v_mov_b32 v{vT}, s{sRK}
            ds_write_b32 v{vZ2}, v{vT} offset:{LFL}
            s_waitcnt lgkmcnt(0)
L_p1_{L}:
            """)
            if pk2:
                a(f"""
                s_xor_b32 s{sTMP}, s{sIT}, {pk2+1}
                s_or_b32 s{sTMP}, s{sTMP}, s{sWAVE}
                s_cbranch_scc1 L_u1_{L}
                s_waitcnt lgkmcnt(0)
                v_mov_b32 v{vT}, s{sRK}
                ds_write_b32 v{vZ2}, v{vT} offset:{LFL}
                s_waitcnt lgkmcnt(0)
L_u1_{L}:
                """)
        if b % sbar == 0:
            a(f"s_cmp_lt_u32 s{sIT}, {bskip}\ns_cbranch_scc1 L_knb{b}_{L}")
            if bmask:
                a(f"s_and_b32 s{sTMP}, s{sIT}, {bmask}\ns_cbranch_scc1 L_knb{b}_{L}")
            a(f"s_barrier\nL_knb{b}_{L}:")
        if pr and b == 0:
            a(f"""
            s_cmp_lg_u32 s{sIT}, {NR-1}
            s_cbranch_scc1 L_p2_{L}
            v_mov_b32 v{vT}, 0
            ds_read_b32 v{vT}, v{vT} offset:{LFL}
            s_waitcnt lgkmcnt(0)
            v_readfirstlane_b32 s{sRK}, v{vT}
L_p2_{L}:
            """)
            rank_use("p", NR - 1, glv, 8, True)
            if pk2:
                a(f"""
                s_cmp_lg_u32 s{sIT}, {pk2+1}
                s_cbranch_scc1 L_u2_{L}
                v_mov_b32 v{vT}, 0
                ds_read_b32 v{vT}, v{vT} offset:{LFL}
                s_waitcnt lgkmcnt(0)
                v_readfirstlane_b32 s{sRK}, v{vT}
L_u2_{L}:
                """)
                rank_use("u", pk2 + 1, pl2, 8, True)
                a(f"""
                s_xor_b32 s{sTMP}, s{sIT}, {pk2}
                s_or_b32 s{sTMP}, s{sTMP}, s{sWAVE}
                s_cbranch_scc1 L_u3_{L}
                s_waitcnt lgkmcnt(0)
                s_cmp_eq_u32 s{sFLAG}, 0
                s_cbranch_scc1 L_u3_{L}
                s_mov_b32 s{sRK}, 1
                s_atomic_add s{sRK}, s[{sCTR}:{sCTR+1}], 12 glc
L_u3_{L}:
                """)
        if pr and b == prb:
            a(f"""
            s_xor_b32 s{sTMP}, s{sIT}, {git}
            s_or_b32 s{sTMP}, s{sTMP}, s{sWAVE}
            s_cbranch_scc1 L_p3_{L}
            s_waitcnt lgkmcnt(0)
            s_cmp_eq_u32 s{sFLAG}, 0
            s_cbranch_scc1 L_p3_{L}
            s_mov_b32 s{sRK}, 1
            s_atomic_add s{sRK}, s[{sCTR}:{sCTR+1}], 4 glc
L_p3_{L}:
            """)
        grank(b)
        ktile(b)
    a(f"""
    v_add_u32 v{vLA}, {128*NB}, v{vLA}
    s_add_u32 s{sIT}, s{sIT}, 1
    s_cmp_lt_u32 s{sIT}, {NR}
    s_cbranch_scc1 L_kloop_{L}
    v_subrev_u32 v{vLA}, {128*T}, v{vLA}
    """)
    lane_sum(vM, "v_max_f32")
    a(f"""
    v_mul_f32 v{vT2}, s{sC}, v{vM}
    v_lshlrev_b32 v{vT}, 2, v0
    v_lshlrev_b32 v{vZ}, 4, v0
    v_mov_b32_dpp v{vM}, v{vT2} row_newbcast:0 row_mask:0xf bank_mask:0x3
    s_nop 1
    v_mov_b32_dpp v{vM}, v{vT2} row_newbcast:8 row_mask:0xf bank_mask:0xc
    ds_write_b32 v{vZ2}, v{vM} offset:{LMX}
    s_waitcnt lgkmcnt(0)
    s_barrier
    """)
    for i in range(NW + 1):
        a(f"ds_read_b32 v{vB+i}, v{vT} offset:{LMX + 256*i}")
    a(f"""
    ds_read_b128 {q4(vB,2)}, v{vZ} offset:{LTR}
    ds_read_b128 {q4(vS)}, v{vLA}
    s_mov_b32 s{sIT}, 1
    s_cmp_lg_u32 s{sWAVE}, 0
    s_waitcnt lgkmcnt({0 if trace else 1})
    v_max3_f32 v{vM}, v{vB}, v{vB+1}, v{vB+2}
    v_max3_f32 v{vM}, v{vM}, v{vB+3}, v{vB+4}
    s_cbranch_scc1 L_vloop_{L}
    v_sub_f32 v{vT}, v{vB+4}, v{vM}
    v_exp_f32 v{vT}, v{vT}
    v_cmp_gt_u32 vcc, 16, v0
    v_mul_f32 v{vO}, v{vT}, v{vB+8}
    v_mul_f32 v{vO+1}, v{vT}, v{vB+9}
    v_mul_f32 v{vO+2}, v{vT}, v{vB+10}
    v_mul_f32 v{vO+3}, v{vT}, v{vB+11}
    v_cndmask_b32 v{vL}, 0, v{vT}, vcc
L_vloop_{L}:
    """)
    if rate:
        a(f"s_cmp_lg_u32 s{sIT}, 4\ns_cbranch_scc1 L_rs3_{L}\ns_memrealtime s[68:69]\nL_rs3_{L}:")
        a(f"s_cmp_lg_u32 s{sIT}, 12\ns_cbranch_scc1 L_rs4_{L}\ns_memrealtime s[70:71]\nL_rs4_{L}:")
    for n, it in enumerate(vchk):
        rank_use(f"v{n}", it + 1, rlv, rw, False)
        rank_ask(f"v{n}", it, n)
    group_off()
    for b in range(NB):
        for n, it in enumerate(pvs if b == 0 else []):
            a(f"""
            s_xor_b32 s{sTMP}, s{sIT}, {it+1}
            s_or_b32 s{sTMP}, s{sTMP}, s{sWAVE}
            s_cbranch_scc1 L_q1{n}_{L}
            s_waitcnt lgkmcnt(0)
            v_mov_b32 v{vT}, s{sRK}
            ds_write_b32 v{vZ2}, v{vT} offset:{LFL}
            s_waitcnt lgkmcnt(0)
L_q1{n}_{L}:
            """)
        if b % sbar == 0:
            if bmask:
                a(f"s_and_b32 s{sTMP}, s{sIT}, {bmask}\ns_cbranch_scc1 L_vnb{b}_{L}\ns_barrier\nL_vnb{b}_{L}:")
            else:
                a("s_barrier")
        for n, it in enumerate(pvs if b == 0 else []):
            a(f"""
            s_cmp_lg_u32 s{sIT}, {it+1}
            s_cbranch_scc1 L_q2{n}_{L}
            v_mov_b32 v{vT}, 0
            ds_read_b32 v{vT}, v{vT} offset:{LFL}
            s_waitcnt lgkmcnt(0)
            v_readfirstlane_b32 s{sRK}, v{vT}
L_q2{n}_{L}:
            """)
            rank_use(f"q{n}", it + 1, plv, 8, True)
            a(f"""
            s_xor_b32 s{sTMP}, s{sIT}, {it}
            s_or_b32 s{sTMP}, s{sTMP}, s{sWAVE}
            s_cbranch_scc1 L_q3{n}_{L}
            s_mov_b32 s{sRK}, 7
            s_cmp_eq_u32 s{sFLAG}, 0
            s_cbranch_scc1 L_q3{n}_{L}
            s_mov_b32 s{sRK}, 1
            s_atomic_add s{sRK}, s[{sCTR}:{sCTR+1}], {8 + 4*n} glc
L_q3{n}_{L}:
            """)
        vtile(b)
    a(f"""
    v_add_u32 v{vLA}, {128*NB}, v{vLA}
    s_add_u32 s{sIT}, s{sIT}, 1
    s_cmp_lt_u32 s{sIT}, {NR}
    s_cbranch_scc1 L_vloop_{L}
    """)
    quads = [vS, vS + 4, vS2, vS2 + 4]

    def probs(sq):
        for r in range(4):
            a(f"v_fma_f32 v{sq+r}, v{sq+r}, s{sC}, -v{vM}")
        for r in range(4):
            a(f"v_exp_f32 v{sq+r}, v{sq+r}")
        a("s_nop 0")
        for r in range(4):
            a(f"v_add_f32 v{vL}, v{vL}, v{sq+r}")
        for r in range(4):
            a(f"v_cvt_pk_bf16_f32 v{sq+r}, v{sq+r}, v{sq+r}")

    def frags(dst, sq):
        for r in range(4):
            for j in range(4):
                a(f"v_and_b32 v{dst+4*r+j}, v{vMASK+j}, v{sq+r}")

    def pv(b, src):
        a(f"s_waitcnt vmcnt({4*(3-b)})")
        for r in range(4):
            a(f"v_mfma_f32_16x16x32_bf16 {q4(vO)}, {ring(b,r)}, {q4(src,r)}, {q4(vO)}")

    if dbuf:
        for j in range(1, 4):
            a(f"ds_read_b128 {q4(quads[j])}, v{vLA} offset:{128*j}")
        a("s_waitcnt lgkmcnt(0)" if trace else "s_waitcnt lgkmcnt(3)")
        probs(quads[0])
        frags(vB, quads[0])
        a("s_waitcnt lgkmcnt(0)")
        probs(quads[1])
        frags(vB2, quads[1])
        pv(0, vB)
        if el == 3:
            elect()
        probs(quads[2])
        probs(quads[3])
        frags(vB, quads[2])
        lane_sum(vL, "v_add_f32")
        a(f"ds_write_b32 v{vZ2}, v{vL} offset:{LFL}")
    else:
        vtile(0, 4)
    a(f"""
    s_lshl_b32 s{sTMP}, s2, 10
    v_lshl_add_u32 v{vPO}, v0, 4, s{sTMP}
    s_lshl_b32 s{sTMP}, s{sPAIR}, 8
    s_lshl_b32 s{sTM2}, s{sSPL}, 4
    s_add_u32 s{sTMP}, s{sTMP}, s{sTM2}
    s_add_u32 s{sTMP}, s{sTMP}, {WS_ML}
    v_and_b32 v{vPM}, 8, v0
    v_add_u32 v{vPM}, s{sTMP}, v{vPM}
    """)
    for i in range(7):
        a(f"v_xor_b32 v{vAO+i}, {(i+1) << 10:#x}, v{vPO}\nv_xor_b32 v{vAM+i}, {(i+1) << 4:#x}, v{vPM}")
    a(f"""
    v_bfe_u32 v{vT}, v0, 3, 1
    v_lshl_add_u32 v{vA}, v{vT}, 8, s{sP9}
    v_lshrrev_b32 v{vT}, 4, v0
    v_lshl_add_u32 v{vA}, v{vT}, 6, v{vA}
    v_and_b32 v{vT}, 7, v0
    v_lshl_add_u32 v{vA}, v{vT}, 1, v{vA}
    v_lshlrev_b32 v{vN}, 2, v{vZ2}
    """)
    if otouch == 1:
        a(f"s_load_dword s{sTM2}, s[{sOUT}:{sOUT+1}], s{sP9}")
    if dbuf:
        assert not early
        pv(1, vB2)
        if el == 2:
            elect()
        frags(vB2, quads[3])
        pv(2, vB)
        if el == 1:
            elect()
        pv(3, vB2)
    else:
        for b in range(1, NB):
            vtile(b, NB - b)
    st(3)
    a(f"""
    s_cmp_eq_u32 s{sWAVE}, 0
    s_cbranch_scc1 L_w0_{L}
    s_nop 5
    ds_write_b128 v{vN}, {q4(vO)} offset:{LFO}
    s_waitcnt lgkmcnt(0)
    s_barrier
    s_endpgm
L_w0_{L}:
    """)
    if el == 0:
        elect()
    if not early:
        a(f"s_waitcnt lgkmcnt(0)\ns_cmp_lg_u32 s{sTK}, {S-1}\ns_cbranch_scc1 L_nol1_{L}")
        fetch_others()
        if otouch == 2:
            a(f"global_load_ushort v{vT}, v{vA}, s[{sOUT}:{sOUT+1}]")
        a(f"L_nol1_{L}:")
    a("s_barrier")
    for i in range(1, NW):
        a(f"ds_read_b32 v{vS+i}, v{vZ2} offset:{LFL + 256*i}")
    for i in range(1, NW):
        a(f"ds_read_b128 {q4(vB,i)}, v{vN} offset:{LFO + 1024*i}")
    a(f"""
    v_min_u32 v{vM}, -2, v{vM}
    s_cmp_eq_u32 s{sTK}, {S-1}
    s_waitcnt lgkmcnt(0)
    v_add_f32 v{vS+1}, v{vS+1}, v{vS+2}
    v_add_f32 v{vL}, v{vL}, v{vS+3}
    """)
    for r in range(4):
        a(f"v_add_f32 v{vB+4+r}, v{vB+4+r}, v{vB+8+r}\nv_add_f32 v{vO+r}, v{vO+r}, v{vB+12+r}")
    for r in range(4):
        a(f"v_add_f32 v{vO+r}, v{vO+r}, v{vB+4+r}")
    a(f"v_add_f32 v{vL}, v{vL}, v{vS+1}")
    st(4)
    a(f"s_cbranch_scc1 L_fin_{L}")
    for r in (vO, vO + 1, vO + 2, vO + 3, vL):
        a(f"v_min_u32 v{r}, -2, v{r}")
    a(f"""
    global_store_dwordx4 v{vPO}, {q4(vO)}, s[{sWS}:{sWS+1}] sc1
    s_mov_b64 exec, 0x101
    global_store_dwordx2 v{vPM}, v[{vM}:{vL}], s[{sWS}:{sWS+1}] sc1
    {f"s_mov_b64 exec, -1" if stamp else ""}
    {f"s_branch L_notlast_{L}" if stamp else "s_endpgm"}
L_miss_{L}:
    """)
    fetch_others()
    if otouch == 2:
        a(f"global_load_ushort v{vT}, v{vA}, s[{sOUT}:{sOUT+1}]")
    a(f"""
L_fin_{L}:
    s_waitcnt vmcnt({8 if otouch == 2 else 7})
    v_max3_u32 v{vS}, v{vXM}, v{vXM+2}, v{vXM+4}
    v_max3_u32 v{vS}, v{vS}, v{vXM+6}, v{vXM+8}
    v_max3_u32 v{vS}, v{vS}, v{vXM+10}, v{vXM+12}
    v_cmp_eq_u32 vcc, -1, v{vS}
    v_max3_f32 v{vS+1}, v{vM}, v{vXM}, v{vXM+2}
    v_max3_f32 v{vS+1}, v{vS+1}, v{vXM+4}, v{vXM+6}
    v_max3_f32 v{vS+1}, v{vS+1}, v{vXM+8}, v{vXM+10}
    v_max_f32 v{vS+1}, v{vS+1}, v{vXM+12}
    s_cbranch_vccnz L_miss_{L}
    v_sub_f32 v{vS+2}, v{vM}, v{vS+1}
    """)
    for i in range(7):
        a(f"v_sub_f32 v{vXM+2*i}, v{vXM+2*i}, v{vS+1}")
    a(f"v_exp_f32 v{vS+2}, v{vS+2}")
    for i in range(7):
        a(f"v_exp_f32 v{vXM+2*i}, v{vXM+2*i}")
    a(f"v_mul_f32 v{vS+3}, v{vS+2}, v{vL}")
    for r in range(4):
        a(f"v_mul_f32 v{vB+r}, v{vS+2}, v{vO+r}")
    for i in range(7):
        a(f"v_fmac_f32 v{vS+3}, v{vXM+2*i}, v{vXM+2*i+1}")
    a(f"v_rcp_f32 v{vS+3}, v{vS+3}\ns_waitcnt vmcnt({1 if otouch == 2 else 0})")
    for i in range(7):
        for r in range(0, 4, 2 if pk else 1):
            if pk:
                a(f"v_pk_fma_f32 v[{vB+r}:{vB+r+1}], v[{vXM+2*i}:{vXM+2*i+1}], v[{vXO+4*i+r}:{vXO+4*i+r+1}], "
                  f"v[{vB+r}:{vB+r+1}] op_sel_hi:[0,1,1]")
            else:
                a(f"v_fmac_f32 v{vB+r}, v{vXM+2*i}, v{vXO+4*i+r}")
    for r in range(4):
        a(f"v_mul_f32 v{vB+r}, v{vB+r}, v{vS+3}")
    a(f"""
    v_cmp_u_f32 vcc, v{vB}, v{vB+1}
    v_cmp_u_f32 s[{sNAN}:{sNAN+1}], v{vB+2}, v{vB+3}
    v_cvt_pk_bf16_f32 v{vB}, v{vB}, v{vB+1}
    v_cvt_pk_bf16_f32 v{vB+2}, v{vB+2}, v{vB+3}
    s_nop 0
    s_or_b64 s[{sNAN}:{sNAN+1}], s[{sNAN}:{sNAN+1}], vcc
    s_cbranch_scc1 L_nan_{L}
L_store_{L}:
    {"s_endpgm" if fake == 1 else ""}
    {f"v_lshl_add_u32 v{vA}, v0, 3, s{sP9}" if fake == 2 else ""}
    {f"global_store_dwordx2 v{vA}, v[{vB+2}:{vB+3}], s[{sOUT}:{sOUT+1}] {oflags}" if fake == 2 else ""}
    {"s_endpgm" if fake == 2 else ""}
    global_store_short v{vA}, v{vB}, s[{sOUT}:{sOUT+1}] {oflags}
    global_store_short_d16_hi v{vA}, v{vB}, s[{sOUT}:{sOUT+1}] offset:16 {oflags}
    global_store_short v{vA}, v{vB+2}, s[{sOUT}:{sOUT+1}] offset:32 {oflags}
    global_store_short_d16_hi v{vA}, v{vB+2}, s[{sOUT}:{sOUT+1}] offset:48 {oflags}
    """)
    if stamp:
        a(f"L_notlast_{L}:")
        st(6)
        if diag:
            a(f"s_branch L_diag_{L}")
        else:
            a(f"""
            s_getreg_b32 s{sTMP}, hwreg(HW_REG_XCC_ID)
            s_waitcnt vmcnt(0) lgkmcnt(0)
            s_mov_b32 s{sT+10}, s{sT+8}
            v_mov_b32 v{vS}, s{sT}
            v_mov_b32 v{vS+1}, s{sT+12}
            v_mov_b32 v{vS+2}, s{sTMP}
            {"s_sub_u32 s74, s74, s72" if rate else ""}
            {"s_sub_u32 s70, s70, s68" if rate else ""}
            {"s_add_u32 s%d, s74, s70" % sTK if rate else ""}
            v_mov_b32 v{vS+3}, s{sTK}
L_hold_{L}:
            s_memrealtime s[{sPC}:{sPC+1}]
            s_waitcnt lgkmcnt(0)
            s_sub_u32 s{sPC}, s{sPC}, s{sT}
            s_cmp_lt_u32 s{sPC}, 9000
            s_cbranch_scc1 L_hold_{L}
            s_lshl_b32 s{sTMP}, s2, 4
            s_add_u32 s{sTMP}, s{sTMP}, {WS_STAMP}
            v_mov_b32 v{vT}, s{sTMP}
            {f"s_lshl_b32 s{sTM2}, s2, 8" if trace else ""}
            {f"s_add_u32 s{sTM2}, s{sTM2}, {WS_STAMP + 0x10000}" if trace else ""}
            {f"v_lshl_add_u32 v{vT2}, v0, 2, s{sTM2}" if trace else ""}
            {f"global_store_dword v{vT2}, v{vTR}, s[{sWS}:{sWS+1}]" if trace else ""}
            s_mov_b64 exec, 1
            global_store_dwordx4 v{vT}, {q4(vS)}, s[{sWS}:{sWS+1}]
            s_lshl_b32 s{sTMP}, s2, 5
            s_add_u32 s{sTMP}, s{sTMP}, {WS_STAMP + 0x1000}
            v_mov_b32 v{vT}, s{sTMP}
            """)
            for i in range(7):
                a(f"v_mov_b32 v{vT2}, s{sT+2*i}\nglobal_store_dword v{vT}, v{vT2}, s[{sWS}:{sWS+1}] offset:{4*i}")
    a("s_endpgm")
    a(f"L_nan_{L}:\nv_max3_u32 v{vS}, v{vXM+1}, v{vXM+3}, v{vXM+5}")
    rest = [vXM + 7, vXM + 9, vXM + 11, vXM + 13] + [vXO + i for i in range(28)]
    for i in range(0, len(rest), 2):
        a(f"v_max3_u32 v{vS}, v{vS}, v{rest[i]}, v{rest[i+1]}")
    a(f"""
    v_cmp_eq_u32 vcc, -1, v{vS}
    s_nop 4
    s_cbranch_vccnz L_miss_{L}
    s_branch L_store_{L}
    """)

    hstart = len(a.lines)
    hQ, hK = RING0, RING0 + 16
    pf_code = (f"s_cmp_ge_u32 s{sPAIR}, {pfn}\ns_cbranch_scc1 L_nopf_{L}\ns_getpc_b64 s[{sPC}:{sPC+1}]\nL_pc_{L}:\n"
               f"v_lshlrev_b32 v{vZ}, 7, v0\nv_min_u32 v{vZ}, L_end_{L}-L_pc_{L}, v{vZ}\n"
               f"global_load_dword v{vZ2}, v{vZ}, s[{sPC}:{sPC+1}]\nL_nopf_{L}:")
    if rnd:
        tree_score = "\n".join([
            "s_nop 1",
            f"v_cvt_pk_bf16_f32 v{vN}, v{vS}, v{vN}",
            f"v_lshlrev_b32 v{vM}, 16, v{vN}",
            f"v_and_b32 v{vN}, 0xffff0000, v{vN}",
            f"v_mul_f32 v{vM}, {f32(128 ** -0.5)}, v{vM}",
            f"v_mul_f32 v{vN}, {f32(-1e9)}, v{vN}",
            f"v_cvt_pk_bf16_f32 v{vN}, v{vM}, v{vN}",
            f"v_lshlrev_b32 v{vM}, 16, v{vN}",
            f"v_and_b32 v{vN}, 0xffff0000, v{vN}",
            f"v_add_f32 v{vM}, v{vM}, v{vN}",
            f"v_cvt_pk_bf16_f32 v{vM}, v{vM}, v{vM}",
            f"v_lshlrev_b32 v{vM}, 16, v{vM}",
            f"v_mul_f32 v{vM}, s{sC}, v{vM}"])
    else:
        tree_score = (f"v_mul_f32 v{vN}, {f32(-1e9*math.log2(math.e))}, v{vN}\ns_nop 0\n"
                      f"v_fma_f32 v{vM}, v{vS}, s{sC}, v{vN}")
    rnk_init = ""
    if ranked:
        rnk_init = (f"v_lshlrev_b32 v{vT}, 8, v0\nv_add_u32 v{vT}, {WS_RNK}, v{vT}\n"
                    f"global_store_dwordx4 v{vT}, {q4(vO)}, s[{sWS}:{sWS+1}] sc1\nv_add_u32 v{vT}, 0x4000, v{vT}\n"
                    f"global_store_dwordx4 v{vT}, {q4(vO)}, s[{sWS}:{sWS+1}] sc1")
    touch = ""
    if clrp:
        ptrs = [sWS] if clrp == 1 else [sWS, sKT, sVT, sMK]
        touch = "".join(f"s_load_dword s{sD+j}, s[{p}:{p+1}], 0\n" for j, p in enumerate(ptrs)) + "s_waitcnt lgkmcnt(0)"
        if clrp == 3:
            touch += f"\ns_load_dword s{sD}, s[{sWS}:{sWS+1}], 0x40000\ns_waitcnt lgkmcnt(0)"
    a(f"""
L_help_{L}:
    """)
    if hfirst >= 3:
        a(f"""
        v_lshl_add_u32 v{vA}, v{vT2}, 4, v{vA}
        v_mov_b32 v{vM}, 0xff800000
        v_mov_b32 v{vO}, 0
        v_mov_b32 v{vO+1}, 0
        v_mov_b32 v{vO+2}, 0
        v_mov_b32 v{vO+3}, 0
        s_mov_b32 s{sC}, {f32(c_scale)}
        """)
    else:
        a(f"""
    {wsload if ka else ""}
    s_setprio 3
    v_lshl_add_u32 v{vA}, v{vT2}, 4, v{vA}
    v_and_b32 v0, 63, v0
    v_mov_b32 v{vM}, 0xff800000
    v_mov_b32 v{vO}, 0
    v_mov_b32 v{vO+1}, 0
    v_mov_b32 v{vO+2}, 0
    v_mov_b32 v{vO+3}, 0
    v_mov_b32 v{vB}, -1
    v_mov_b32 v{vB+1}, -1
    v_mov_b32 v{vB+2}, -1
    v_mov_b32 v{vB+3}, -1
    s_mov_b32 s{sC}, {f32(c_scale)}
    s_lshl_b32 s{sTMP}, s2, 10
    v_lshl_add_u32 v{vPO}, v0, 4, s{sTMP}
    s_lshl_b32 s{sTMP}, s{sPAIR}, 8
    s_lshl_b32 s{sTM2}, s{sSPL}, 4
    s_add_u32 s{sTM2}, s{sTM2}, s{sTMP}
    s_add_u32 s{sTM2}, s{sTM2}, {WS_ML}
    v_mov_b32 v{vPM}, s{sTM2}
    {pf_code if pf == 2 else ""}
    s_waitcnt lgkmcnt(0)
    {touch}
    global_store_dwordx4 v{vPO}, {q4(vB)}, s[{sWS}:{sWS+1}] sc1
    s_mov_b64 exec, 1
    global_store_dwordx4 v{vPM}, {q4(vB)}, s[{sWS}:{sWS+1}] sc1
    s_mov_b64 exec, -1
    """)
    a(f"""
    s_cmp_lg_u32 s2, 0
    s_cbranch_scc1 L_noinit_{L}
    v_and_b32 v{vT}, 31, v0
    v_lshlrev_b32 v{vT}, 8, v{vT}
    v_add_u32 v{vT}, {WS_CTR}, v{vT}
    {f"global_store_dwordx4 v{vT}, v[{vO}:{vO+3}], s[{sWS}:{sWS+1}] sc1" if pr else f"global_store_dword v{vT}, v{vO}, s[{sWS}:{sWS+1}] sc1"}
    {rnk_init}
    v_mov_b32 v{vN}, 1
    s_waitcnt vmcnt(0)
    global_store_dword v{vO}, v{vN}, s[{sDBG}:{sDBG+1}] sc1
L_noinit_{L}:
    s_and_b32 s{sTM2}, s{sPAIR}, 7
    s_cmp_lg_u32 s{sSPL}, s{sTM2}
    s_cbranch_scc1 L_notree_{L}
    s_lshr_b32 s{sTM2}, s{sPAIR}, 4
    s_lshl_b32 s{sTM2}, s{sTM2}, 1
    v_lshl_add_u32 v{vT}, v{vT2}, 4, s{sTMP}
    v_and_b32 v{vM}, 7, v0
    v_lshl_add_u32 v{vM}, v{vM}, 1, s{sTMP}
    v_lshl_add_u32 v{vM}, v{vT2}, 6, v{vM}
    v_mov_b32 v{vL}, s{sTM2}
    """)
    for i in range(4):
        a(f"global_load_dwordx4 {q4(hQ, i)}, v{vA}, s[{sQ}:{sQ+1}] offset:{64*i}")
    for i in range(4):
        a(f"global_load_dwordx4 {q4(hK, i)}, v{vT}, s[{sKT}:{sKT+1}] offset:{64*i}")
    for r in range(4):
        a(f"global_load_ushort v{vO+r}, v{vM}, s[{sVT}:{sVT+1}] offset:{16*r}")
    a(f"""
    global_load_ushort v{vN}, v{vL}, s[{sMK}:{sMK+1}]
    s_waitcnt vmcnt(0)
    v_mfma_f32_16x16x32_bf16 {q4(vS)}, {q4(hK,0)}, {q4(hQ,0)}, 0
    v_mfma_f32_16x16x32_bf16 {q4(vS)}, {q4(hK,1)}, {q4(hQ,1)}, {q4(vS)}
    v_mfma_f32_16x16x32_bf16 {q4(vS)}, {q4(hK,2)}, {q4(hQ,2)}, {q4(vS)}
    v_mfma_f32_16x16x32_bf16 {q4(vS)}, {q4(hK,3)}, {q4(hQ,3)}, {q4(vS)}
    v_lshlrev_b32 v{vO}, 16, v{vO}
    v_lshlrev_b32 v{vO+1}, 16, v{vO+1}
    v_lshlrev_b32 v{vO+2}, 16, v{vO+2}
    v_lshlrev_b32 v{vO+3}, 16, v{vO+3}
    v_lshlrev_b32 v{vN}, 16, v{vN}
    v_sub_f32 v{vN}, 1.0, v{vN}
    {tree_score}
L_notree_{L}:
    {pf_code if pf == 1 else ""}
    {f"v_mov_b32 v{vT}, s{sP9}" if otouch == 3 else ""}
    {f"global_load_dword v{vZ}, v{vT}, s[{sOUT}:{sOUT+1}]" if otouch == 3 else ""}
    v_lshlrev_b32 v{vT}, 2, v0
    v_lshlrev_b32 v{vT2}, 4, v0
    ds_write_b32 v{vT}, v{vM} offset:{LMX + 256*NW}
    ds_write_b128 v{vT2}, {q4(vO)} offset:{LTR}
    s_waitcnt vmcnt(0) lgkmcnt(0)
    """)
    if hfirst:
        a(f"s_branch L_end_{L}" if hfirst in (1, 4) else "s_endpgm")
        blk = a.lines[hstart:]
        del a.lines[hstart:]
        a.lines[hpos:hpos] = [f"    s_branch L_kloop_{L}"] + blk
    if diag:
        a(f"s_endpgm\nL_diag_{L}:")
        diag_tail(a, L, sDBG, sT, sT + 2 * int(diag[-1]), 66, diag[:-1])
    a(f"L_end_{L}:\ns_endpgm")
    lds = SCL + NW * 128 * T
    return dict(label=label, body=a.text(), grid=NWG, block=64 * (NW + 1), lds=lds, nvgpr=nv, acc=nv,
                nsgpr=102 if table else 76 if stamp or ranked or qm else 52)


if __name__ == "__main__":
    k = gen(NAME + "_kernel")
    sys.stdout.write(final_file(k))
```
